```python
import torch

def _softmax(x, axis=-1):
    return torch.softmax(x, dim=axis)
def _gelu(x):
    return torch.nn.functional.gelu(x, approximate="tanh")
def _silu(x):
    return torch.nn.functional.silu(x)
def _sigmoid(x):
    return torch.sigmoid(x)
def _layernorm(x, axis=-1, eps=1e-5):
    m = x.mean(dim=axis, keepdim=True)
    v = x.var(dim=axis, keepdim=True, unbiased=False)
    return (x - m) / torch.sqrt(v + eps)
def _scatter_add(tgt, idx, src, axis=0):
    return tgt.clone().index_add_(axis, idx, src)
def _segment_sum(src, seg, n):
    out = torch.zeros((n,) + src.shape[1:], dtype=src.dtype)
    return out.index_add_(0, seg, src)
def _pad(x, pw):
    flat = tuple(v for pair in reversed(pw) for v in pair)
    return torch.nn.functional.pad(x, flat)

kernel_name = 'standalone__gqa_softmax__near_ridge'

def setup_inputs():

    _w = (lambda a: (lambda t: t.to(torch.bfloat16) if t.is_floating_point() else t)(torch.as_tensor(a)))
    B, Hq, Hkv, Sq, Sk, D = 32, 32, 8, 368, 512, 128
    return {
        "q": _w((lambda *s: torch.randn(*s, dtype=torch.bfloat16) * 0.8)(B, Hq, Sq, D)),
        "k": _w((lambda *s: torch.randn(*s, dtype=torch.bfloat16) * 0.8)(B, Hkv, Sk, D)),
        "v": _w((lambda *s: torch.randn(*s, dtype=torch.bfloat16) * 0.05)(B, Hkv, Sk, D)),
    }

def reference(q, k, v):
    B, Hq, Sq, D = q.shape
    Hkv = k.shape[1]
    rep = Hq // Hkv
    k = (lambda x, n, axis: torch.repeat_interleave(x, n, dim=axis))(k, rep, axis=1)
    v = (lambda x, n, axis: torch.repeat_interleave(x, n, dim=axis))(v, rep, axis=1)
    scale = D ** -0.5
    scores = torch.einsum("bhqd,bhkd->bhqk", q, k) * scale
    p = _softmax(scores, axis=-1)
    return torch.einsum("bhqk,bhkd->bhqd", p, v)
```

```python
import re

def R(p, i, n=1):
    return [f"{p}{i+k}" for k in range(n)]
def rng(p, i, n):
    return f"{p}{i}" if n == 1 else f"{p}[{i}:{i+n-1}]"

class I:
    __slots__ = ("kind", "text", "rd", "wr", "exp", "prod", "ldsr", "ldsw", "c", "targets", "vtargets", "key", "nops", "n", "cmt")
    def __init__(s, kind, text, rd=(), wr=(), exp=None, prod=None, ldsr=None, ldsw=None, c=None,
                 targets=None, vtargets=None, n=0, cmt=None):
        s.kind = kind; s.text = text; s.rd = list(rd); s.wr = list(wr)
        s.exp = exp or {}; s.prod = prod or {}
        s.ldsr = ldsr; s.ldsw = ldsw; s.c = c or []
        s.targets = targets; s.vtargets = vtargets; s.key = None; s.n = n; s.cmt = cmt

def tagmap(regs, tag):
    return {r: (tag, k) for k, r in enumerate(regs)}

def mfma(d, a, b, c=None, ta=None, tb=None, tc=None, td=None):
    D = R("v", d, 4); A = R(a[0], a[1], 4); B = R(b[0], b[1], 4) if isinstance(b, tuple) else R("v", b, 4)
    bt = rng(b[0], b[1], 4) if isinstance(b, tuple) else rng("v", b, 4)
    ctext = rng("v", d, 4) if c else "0"
    exp = {}
    if ta is not None: exp.update(tagmap(A, ta))
    if tb is not None: exp.update(tagmap(B, tb))
    if c and tc is not None: exp.update(tagmap(D, tc))
    prod = tagmap(D, td) if td is not None else {}
    return I("mfma", f"v_mfma_f32_16x16x32_bf16 {rng('v', d, 4)}, {rng(a[0], a[1], 4)}, {bt}, {ctext}",
             rd=A + B + (D if c else []), wr=D, exp=exp, prod=prod, c=(D if c else []))

def valu(text, rd, wr, exp=None, prod=None, trans=False):
    return I("trans" if trans else "valu", text, rd=rd, wr=wr, exp=exp, prod=prod)
def salu(text, rd=(), wr=()):
    return I("salu", text, rd=rd, wr=wr)
def wait_lgkm(targets):
    return I("wait", None, targets=targets)
def wait_vm(vtargets):
    return I("wait", None, vtargets=vtargets)
def wait_both(targets, vtargets):
    return I("wait", None, targets=targets, vtargets=vtargets)
def barrier():
    return I("bar", "s_barrier")
def nop(k):
    return I("nop", f"s_nop {k}", n=k)
def label(name):
    return I("label", f"{name}:")
def raw(text):
    return I("raw", text)

class CheckError(Exception):
    pass

class Sim:
    def __init__(s, waits, nops, autonop, count):
        s.waits = waits
        s.nops = nops
        s.autonop = autonop
        s.count = count
        s.tag = {}
        s.lastw = {}
        s.lastc = {}
        s.laststore = {}
        s.pend = {}
        s.lseq = 0; s.vseq = 0; s.ldone = 0; s.vdone = 0
        s.lops = {}; s.vops = {}
        s.reg = {}
        s.epoch = 0
        s.cnt = 0; s.t = 0; s.tm = -100
        s.errors = []; s.changed = False
    def err(s, ins, msg):
        s.errors.append(f"{ins.key} {ins.text}: {msg}")
    def region(s, name):
        if name not in s.reg:
            s.reg[name] = dict(tag=None, w=None, wep=None, rp=set(), rep=-1)
        return s.reg[name]
    def complete(s, cls, upto):
        ops = s.lops if cls == "l" else s.vops
        cur = s.ldone if cls == "l" else s.vdone
        for q in range(cur + 1, upto + 1):
            for (rn, rw) in ops.pop(q, []):
                g = s.region(rn)
                if rw == "w":
                    if g["w"] == (cls, q): g["wep"] = s.epoch
                else:
                    g["rp"].discard((cls, q)); g["rep"] = max(g["rep"], s.epoch)
        if cls == "l": s.ldone = max(cur, upto)
        else: s.vdone = max(cur, upto)
    def need(s, ins, prodcnt, prodt, states, timeok=None):
        have = s.cnt - prodcnt - 1
        if have >= states: return 0
        if timeok is not None and (s.tnext - prodt - 1) >= timeok: return 0
        return states - have
    def step(s, ins):
        k = ins.kind
        if k in ("label", "raw"): return
        extra = s.nops.get(ins.key, 0)
        s.cnt += extra; s.t += extra
        s.tnext = s.t + 1
        if k == "mfma": s.tnext = max(s.tnext, s.tm + 4)
        s.cnt += 1
        miss = 0; why = ""
        def upd(m, w):
            nonlocal miss, why
            if m > miss: miss = m; why = w
        isv = k in ("valu", "trans")
        for r in ins.rd:
            lw = s.lastw.get(r)
            if lw:
                pk, pc, pt = lw
                if pk == "mfma":
                    if k == "mfma" and r in ins.c:
                        pass
                    else:
                        upd(s.need(ins, pc, pt, 8, 12), f"mfma D {r} -> read")
                elif pk in ("valu", "trans"):
                    if k == "mfma": upd(s.need(ins, pc, pt, 2), f"valu {r} -> mfma")
                    if pk == "trans" and k == "valu": upd(s.need(ins, pc, pt, 1), f"trans {r} -> valu")
                    if r[0] == "s" or r == "vcc":
                        if k in ("vmem",): upd(s.need(ins, pc, pt, 5), f"valu sgpr {r} -> vmem")
                        if isv: upd(s.need(ins, pc, pt, 2), f"valu sgpr {r} -> valu")
                    if "readfirstlane" in (ins.text or "") or "readlane" in (ins.text or ""):
                        upd(s.need(ins, pc, pt, 1), f"valu {r} -> readlane")
                elif pk == "salu" and r == "m0" and k == "vmem":
                    upd(s.need(ins, pc, pt, 1), "m0 -> dma")
            if r in s.pend and not s.count:
                cls, q = s.pend[r]
                if q > (s.ldone if cls == "l" else s.vdone): s.err(ins, f"read of {r} with load in flight")
        for r in ins.wr:
            lw = s.lastw.get(r)
            if lw and lw[0] == "mfma" and not (k == "mfma"):
                upd(s.need(ins, lw[1], lw[2], 8, 12), f"mfma D {r} -> write")
            if lw and lw[0] == "mfma" and k == "mfma" and r not in ins.c:
                pass
            if isv and r in s.lastc: upd(s.need(ins, s.lastc[r], 0, 3), f"srcC {r} WAR")
            if r in s.laststore: upd(s.need(ins, s.laststore[r], 0, 2), f"store data {r} WAR")
            if r in s.pend and not s.count:
                cls, q = s.pend[r]
                if q > (s.ldone if cls == "l" else s.vdone): s.err(ins, f"write of {r} with load in flight")
        if miss:
            if ins.key[0] in s.autonop:
                s.nops[ins.key] = s.nops.get(ins.key, 0) + miss; s.changed = True
                s.cnt += miss; s.t += miss; s.tnext = s.t + 1
                if k == "mfma": s.tnext = max(s.tnext, s.tm + 4)
            elif not s.count:
                s.err(ins, f"hazard: {why} missing {miss}")
        s.t = s.tnext
        if k == "mfma": s.tm = s.t
        if k == "nop": s.cnt += ins.n; s.t += ins.n
        if not s.count:
            for r, tg in ins.exp.items():
                if s.tag.get(r) != tg: s.err(ins, f"{r} holds {s.tag.get(r)} expected {tg}")
        for r in ins.wr:
            s.tag[r] = ins.prod.get(r)
            s.lastw[r] = (k, s.cnt, s.t)
            s.pend.pop(r, None)
        for r in ins.c: s.lastc[r] = s.cnt
        if k in ("dsr", "dsw"):
            s.lseq += 1; cls, q, ops = "l", s.lseq, s.lops
        elif k == "vmem":
            s.vseq += 1; cls, q, ops = "v", s.vseq, s.vops
        if k in ("dsr", "dsw", "vmem"):
            ops[q] = []
            if k != "dsw":
                for r in ins.wr: s.pend[r] = (cls, q)
            if k == "vmem" and "store" in ins.text:
                for r in ins.rd:
                    if r[0] == "v": s.laststore[r] = s.cnt
            if ins.ldsr:
                for (rn, tg) in ins.ldsr:
                    g = s.region(rn)
                    if not s.count:
                        if g["tag"] != tg: s.err(ins, f"LDS {rn} holds {g['tag']} expected {tg}")
                        if g["wep"] is None or g["wep"] >= s.epoch: s.err(ins, f"LDS {rn} read without completed write + barrier")
                    g["rp"].add((cls, q)); ops[q].append((rn, "r"))
            if ins.ldsw:
                for (rn, tg) in ins.ldsw:
                    g = s.region(rn)
                    if not s.count:
                        if g["rp"] or g["rep"] >= s.epoch: s.err(ins, f"LDS {rn} overwritten before readers finished + barrier")
                    g["tag"] = tg; g["w"] = (cls, q); g["wep"] = None; ops[q].append((rn, "w"))
        if k == "bar": s.epoch += 1
        if k == "wait":
            w = s.waits.setdefault(ins.key, [None, None])
            for idx, (tg, cls) in enumerate(((ins.targets, "l"), (ins.vtargets, "v"))):
                if tg is None: continue
                seq = s.lseq if cls == "l" else s.vseq
                if s.count:
                    if tg == "all": N = 0
                    elif isinstance(tg, int): N = tg
                    else:
                        q = 0
                        for x in tg:
                            if isinstance(x, tuple):
                                g = s.region(x[1])
                                if x[0] == "w" and g["w"] and g["w"][0] == cls: q = max(q, g["w"][1])
                                if x[0] == "r":
                                    for (c2, q2) in g["rp"]:
                                        if c2 == cls: q = max(q, q2)
                            elif x in s.pend and s.pend[x][0] == cls: q = max(q, s.pend[x][1])
                        N = seq - q if q else None
                    if N is not None:
                        N = min(N, 15 if cls == "l" else 63)
                        w[idx] = N if w[idx] is None else min(w[idx], N)
                        s.complete(cls, seq - N)
                else:
                    if w[idx] is not None: s.complete(cls, seq - w[idx])

def resolve(trace, autonop, init=None):
    nops = {}
    for it in range(50):
        waits = {}
        sim = Sim(waits, nops, autonop, True)
        for ins in trace: sim.step(ins)
        if not sim.changed: break
    sim = Sim(waits, nops, set(), False)
    for ins in trace: sim.step(ins)
    return waits, nops, sim.errors

def emit(ins, waits, nops):
    out = []
    e = nops.get(ins.key, 0)
    while e > 0:
        k = min(e, 8); out.append(f"    s_nop {k-1}"); e -= k
    if ins.kind == "wait":
        w = waits.get(ins.key, [None, None])
        parts = []
        if w[1] is not None: parts.append(f"vmcnt({w[1]})")
        if w[0] is not None: parts.append(f"lgkmcnt({w[0]})")
        if parts: out.append("    s_waitcnt " + " ".join(parts))
        else: out.append("    s_nop 0")
    elif ins.kind == "label":
        out.append(ins.text)
    else:
        out.append("    " + ins.text + (f"    ; {ins.cmt}" if ins.cmt else ""))
    return out
```

```python
import sys, struct, math
from asmgen import *
from build import build
KN = "standalone__gqa_softmax__near_ridge_kernel"
NB = 46
QB = 0
PB = 32768
LB = 98304
MXB = 99328
VST = 32768
LDS = 163840
sQ, sK, sV, sO = 8, 12, 16, 20
sW = 28; sQoff = 29; sM = 30; sO0 = 31; sO1 = 32; sCnt = 33; sT = 34; sC = 35; sMask = 36; sT2 = 37
class Alloc:
    def __init__(s, start): s.p = start
    def get(s, n, al=4):
        s.p = (s.p + al - 1) // al * al; r = s.p; s.p += n; assert s.p <= 256, "out of vgprs"; return r
al = Alloc(1)
vL16 = al.get(1,1); vQrd = al.get(1,1); vPw = al.get(1,1); vPr = [al.get(1,1) for _ in range(3)]
vLw = al.get(1,1); vLr = al.get(1,1); vQd = al.get(1,1); vO = al.get(1,1); vMax = al.get(1,1); vMin = al.get(1,1)
vT = [al.get(1,1) for _ in range(4)]
vLs = [al.get(1,1) for _ in range(2)]; vRc = [al.get(1,1) for _ in range(2)]
vOnes = al.get(4)
vQ = [[al.get(4) for j in range(4)] for u in range(2)]
vS = [al.get(4) for _ in range(4)]
vPo = {(c,u): al.get(4) for u in range(2) for c in range(4)}
vPoAlt = al.get(4)
vPs = [[al.get(4) for c in range(4)] for k in range(3)]
vOa = [[[al.get(4) for dt in range(2)] for u in range(2)] for par in range(2)]
vLa = [al.get(4) for u in range(2)]
vLd = [al.get(4) for u in range(2)]
vOut = [al.get(4) for u in range(2)]
VTOP = al.p
def aK(t, j): return 16*t + 4*j
def aV(k, c, dt): return 128 + 32*k + 8*c + 4*dt
def Po(c, u, i): return vPoAlt if (c, u) == (0, 0) and (i & 1) else vPo[(c, u)]
def f32(x): return struct.unpack("<I", struct.pack("<f", x))[0]
CSC = f32(math.log2(math.e) / math.sqrt(128.0))
LHI = f32(2.0**40); LLO = f32(2.0**-40)

def qk(i, T, j, S=None):
    u, t = T // 8, T % 8
    S = vS[T % 4] if S is None else S
    return mfma(S, ("a", aK(t, j)), vQ[u][j], c=(j > 0), ta=("K", t, j), tb=("Q", i, u, j),
                tc=("S", i, T, j-1), td=("S", i, T, j))
def ex(i, T, r, S=None):
    S = vS[T % 4] if S is None else S
    v = f"v{S+r}"
    return valu(f"v_exp_f32 {v}, {v}", [v], [v], exp={v: (("S", i, T, 3), r)}, prod={v: (("E", i, T), r)}, trans=True)
def cv(i, T, h, S=None):
    S = vS[T % 4] if S is None else S
    u, c, half = T // 8, (T % 8) // 2, T % 2
    d = Po(c, u, i) + 2*half + h
    a, b = f"v{S+2*h}", f"v{S+2*h+1}"
    return valu(f"v_cvt_pk_bf16_f32 v{d}, {a}, {b}", [a, b], [f"v{d}"],
                exp={a: (("E", i, T), 2*h), b: (("E", i, T), 2*h+1)}, prod={f"v{d}": (("P", i, 0, c, u), 2*half+h)})
def pw(i, c, u):
    d = Po(c, u, i); buf = i & 1
    return I("dsw", f"ds_write_b128 v{vPw}, {rng('v', d, 4)} offset:{buf*32768 + (u*4+c)*1024}",
             rd=[f"v{vPw}"] + R("v", d, 4), exp=tagmap(R("v", d, 4), ("P", i, 0, c, u)),
             ldsw=[(("P", buf, c, u), ("P", i))])
def pr(i, m, c):
    k, u = m // 2, m % 2; buf = i & 1; d = vPs[m % 3][c]
    return I("dsr", f"ds_read_b128 {rng('v', d, 4)}, v{vPr[k]} offset:{buf*32768 + (u*4+c)*1024}",
             rd=[f"v{vPr[k]}"], wr=R("v", d, 4), prod=tagmap(R("v", d, 4), ("P", i, k+1, c, u)),
             ldsr=[(("P", buf, c, u), ("P", i))])
def qr(i, u, j):
    d = vQ[u][j]
    return I("dsr", f"ds_read_b128 {rng('v', d, 4)}, v{vQrd} offset:{(i & 1)*8192 + (u*4+j)*1024}",
             rd=[f"v{vQrd}"], wr=R("v", d, 4), exp={f"v{vQrd}": ("qrd", (i >> 1) & 1)},
             prod=tagmap(R("v", d, 4), ("Q", i, u, j)), ldsr=[(("Q", i & 3, (u*4+j) & 1), ("Q", i))])
def pv(i, k, c, u, dt):
    d = vOa[i & 1][u][dt]
    b = Po(c, u, i) if k == 0 else vPs[((k-1)*2 + u) % 3][c]
    n = k*4 + c
    return mfma(d, ("a", aV(k, c, dt)), b, c=(n > 0), ta=("V", k, c, dt), tb=("P", i, k, c, u),
                tc=("O", i, u, dt, n-1), td=("O", i, u, dt, n))
def ones(i, u, c):
    return mfma(vLa[u], ("v", vOnes), Po(c, u, i), c=(c > 0), ta="ones", tb=("P", i, 0, c, u),
                tc=("L", i, u, c-1), td=("L", i, u, c))
def lw(i):
    buf = i & 1
    return I("dsw", f"ds_write2_b32 v{vLw}, v{vLa[0]}, v{vLa[1]} offset0:{buf*128} offset1:{buf*128+4}",
             rd=[f"v{vLw}", f"v{vLa[0]}", f"v{vLa[1]}"],
             exp={f"v{vLa[0]}": (("L", i, 0, 3), 0), f"v{vLa[1]}": (("L", i, 1, 3), 0)}, ldsw=[(("L", buf), ("L", i))])
def lr(i, u):
    buf = i & 1; d = vLd[u]
    return I("dsr", f"ds_read_b128 {rng('v', d, 4)}, v{vLr} offset:{buf*512 + u*16}", rd=[f"v{vLr}"], wr=R("v", d, 4),
             prod=tagmap(R("v", d, 4), ("LP", i, u)), ldsr=[(("L", buf), ("L", i))])
def ladd(i, u, s):
    d = vLd[u]
    if s == 0: return valu(f"v_add_f32 v{d}, v{d}, v{d+1}", R("v", d, 2), [f"v{d}"], exp={f"v{d}": (("LP", i, u), 0), f"v{d+1}": (("LP", i, u), 1)}, prod={f"v{d}": ("LA", i, u)})
    if s == 1: return valu(f"v_add_f32 v{d+2}, v{d+2}, v{d+3}", R("v", d+2, 2), [f"v{d+2}"], exp={f"v{d+2}": (("LP", i, u), 2), f"v{d+3}": (("LP", i, u), 3)}, prod={f"v{d+2}": ("LB", i, u)})
    return valu(f"v_add_f32 v{vLs[u]}, v{d}, v{d+2}", [f"v{d}", f"v{d+2}"], [f"v{vLs[u]}"], exp={f"v{d}": ("LA", i, u), f"v{d+2}": ("LB", i, u)}, prod={f"v{vLs[u]}": ("LS", i, u)})
def rcp(i, u):
    return valu(f"v_rcp_f32 v{vRc[u]}, v{vLs[u]}", [f"v{vLs[u]}"], [f"v{vRc[u]}"], exp={f"v{vLs[u]}": ("LS", i, u)}, prod={f"v{vRc[u]}": ("RC", i, u)}, trans=True)
def chk(i, mx):
    v = vMax if mx else vMin
    return valu(f"v_{'max' if mx else 'min'}3_f32 v{v}, v{v}, v{vLs[0]}, v{vLs[1]}", [f"v{v}", f"v{vLs[0]}", f"v{vLs[1]}"], [f"v{v}"],
                exp={f"v{vLs[0]}": ("LS", i, 0), f"v{vLs[1]}": ("LS", i, 1)})
def omul(i, u, dt, r):
    v = f"v{vOa[i & 1][u][dt] + r}"
    return valu(f"v_mul_f32 {v}, {v}, v{vRc[u]}", [v, f"v{vRc[u]}"], [v], exp={v: (("O", i, u, dt, 15), r), f"v{vRc[u]}": ("RC", i, u)}, prod={v: (("N", i, u, dt), r)})
def ocv(i, u, dt, h):
    s = vOa[i & 1][u][dt] + 2*h; d = vOut[u] + 2*dt + h
    return valu(f"v_cvt_pk_bf16_f32 v{d}, v{s}, v{s+1}", R("v", s, 2), [f"v{d}"],
                exp={f"v{s}": (("N", i, u, dt), 2*h), f"v{s+1}": (("N", i, u, dt), 2*h+1)}, prod={f"v{d}": (("OUT", i, u), 2*dt+h)})
STFLAG = ""
def ost(i, u):
    so = sO0 if u == 0 else sO1
    return I("vmem", f"buffer_store_dwordx4 {rng('v', vOut[u], 4)}, v{vO}, s[{sO}:{sO+3}], s{so} offen{STFLAG}",
             rd=R("v", vOut[u], 4) + [f"v{vO}", f"s{so}"], exp={**tagmap(R("v", vOut[u], 4), ("OUT", i, u)), f"s{so}": ("so", i, u)})
def so_next(i, u):
    so = sO0 if u == 0 else sO1
    x = salu(f"s_add_u32 s{so}, s{so}, 0x2000", [f"s{so}"], [f"s{so}", "scc"]); x.exp = {f"s{so}": ("so", i-1, u)}; x.prod = {f"s{so}": ("so", i, u)}; return x
QFLAG = ""
def m0set(i, h):
    x = salu(f"s_mov_b32 m0, s{sM}" if h == 0 else f"s_add_u32 m0, s{sM}, {1024-64}", [f"s{sM}"], ["m0"] + (["scc"] if h else []))
    x.exp = {f"s{sM}": ("sM", i & 3)}; x.prod = {"m0": ("m0", i & 3, h)}; return x
def qdma(i, h):
    return I("vmem", f"buffer_load_dwordx4 v{vQd}, s[{sQ}:{sQ+3}], s{sQoff} offen{' offset:64' if h else ''}{QFLAG} lds",
             rd=[f"v{vQd}", f"s{sQoff}", "m0"], exp={"m0": ("m0", i & 3, h), f"s{sQoff}": ("qoff", i)}, ldsw=[(("Q", i & 3, h), ("Q", i))])
def q_next(i):
    a = salu(f"s_add_u32 s{sQoff}, s{sQoff}, 0x2000", [f"s{sQoff}"], [f"s{sQoff}", "scc"]); a.exp = {f"s{sQoff}": ("qoff", i-1)}; a.prod = {f"s{sQoff}": ("qoff", i)}
    b = salu(f"s_add_u32 s{sM}, s{sM}, 0x2000", [f"s{sM}"], [f"s{sM}", "scc"]); b.exp = {f"s{sM}": ("sM", (i-1) & 3)}; b.prod = {f"s{sM}": ("sM'", i & 3)}
    c = salu(f"s_and_b32 s{sM}, s{sM}, 0x7fff", [f"s{sM}"], [f"s{sM}", "scc"]); c.exp = {f"s{sM}": ("sM'", i & 3)}; c.prod = {f"s{sM}": ("sM", i & 3)}
    return [a, b, c]
def qtoggle(i):
    v = f"v{vQrd}"
    return valu(f"v_xor_b32 {v}, 0x4000, {v}", [v], [v], exp={v: ("qrd", ((i >> 1) & 1) ^ 1)}, prod={v: ("qrd", (i >> 1) & 1)})

def iteration(i, QK=True, PV=True, EP=True, DMA=True):
    M = []
    pvseq = [(k, u, dt) for k in range(4) for u in range(2) for dt in range(2)]
    for T in range(16):
        M += [qk(i, T, j) if QK else None for j in range(4)]
        if T == 0: M += [ones(i-1, 1, c) if PV else None for c in range(4)]
        if T == 8: M += [ones(i, 0, c) if QK else None for c in range(4)]
        k, u, dt = pvseq[T]
        M += [pv(i-1, k, c, u, dt) if PV else None for c in range(4)]
    assert len(M) == 136
    G = [[] for _ in range(136)]
    def put(g, *ins):
        for x in ins:
            if x is not None: G[g].append(x)
    Rr = [6, 18, 26, 34, 42, 50, 58, 66, 74, 86, 94, 102, 110, 118, 126, 134]
    cg = {T: (Rr[T]+4, Rr[T]+5) for T in range(16)}
    cg[0] = (11, 12)
    rd = {}
    if QK:
        for j, g in enumerate((2, 3, 11, 12)): rd[g] = qr(i, 1, j)
    if QK and i + 1 < NB:
        for j, g in enumerate((114, 115, 122, 123)): rd[g] = qr(i+1, 0, j)
    if PV:
        slots = [17, 22, 23, 25, 30, 31, 38, 39, 46, 47, 54, 55, 62, 63, 70, 71, 78, 79, 90, 91, 98, 99, 106, 107]
        for n, g in enumerate(slots): rd[g] = pr(i-1, n // 4, n % 4)
        rd[130] = lr(i-1, 0); rd[131] = lr(i-1, 1)
    if PV:
        put(15, wait_both("all", [("w", ("Q", (i+1) & 3, 0)), ("w", ("Q", (i+1) & 3, 1))] if (QK and i+1 < NB) else None))
        put(16, barrier())
        for m, g in enumerate((37, 53, 75, 89, 105, 121)): put(g, wait_lgkm(sum((R("v", vPs[m % 3][c], 4) for c in range(4)), [])))
    elif QK:
        put(15, wait_both("all", [("w", ("Q", (i+1) & 3, 0)), ("w", ("Q", (i+1) & 3, 1))]))
        put(16, barrier())
    if QK:
        put(66, wait_lgkm(sum((R("v", vQ[1][j], 4) for j in range(4)), [])))
        if i + 1 < NB: put(135, wait_lgkm(sum((R("v", vQ[0][j], 4) for j in range(4)), [])))
    if EP:
        put(1, wait_lgkm(R("v", vLd[0], 4) + R("v", vLd[1], 4)))
        put(18, so_next(i-2, 0)); put(19, so_next(i-2, 1))
    if DMA:
        a, b, c = q_next(i+4)
        put(26, a); put(27, b); put(28, c); put(29, m0set(i+4, 0))
        put(32, qdma(i+4, 0)); put(34, m0set(i+4, 1)); put(41, qdma(i+4, 1))
    for g, x in rd.items(): put(g, x)
    if PV:
        put(0, ex(i-1, 15, 2)); put(1, ex(i-1, 15, 3)); put(2, cv(i-1, 15, 0)); put(3, cv(i-1, 15, 1)); put(4, pw(i-1, 3, 1))
        put(10, lw(i-1))
    if QK:
        for T in range(16):
            for r in range(4):
                if Rr[T] + r < 136: put(Rr[T]+r, ex(i, T, r))
            if T < 15:
                put(cg[T][0], cv(i, T, 0)); put(cg[T][1], cv(i, T, 1))
                if T % 2: put(cg[T][1]+1, pw(i, (T % 8)//2, T//8))
    if EP:
        e = i - 2
        put(5, ladd(e, 0, 0), ladd(e, 0, 1)); put(13, ladd(e, 1, 0), ladd(e, 1, 1)); put(14, ladd(e, 0, 2), ladd(e, 1, 2))
        put(15, rcp(e, 0)); put(16, rcp(e, 1)); put(17, chk(e, True)); put(25, chk(e, False))
        put(33, omul(e,0,0,0), omul(e,0,0,1)); put(48, omul(e,0,0,2), omul(e,0,0,3)); put(49, omul(e,0,1,0), omul(e,0,1,1))
        put(57, omul(e,0,1,2), omul(e,0,1,3)); put(64, ocv(e,0,0,0), ocv(e,0,0,1)); put(65, ocv(e,0,1,0), ocv(e,0,1,1))
        put(73, ost(e, 0))
        put(80, omul(e,1,0,0), omul(e,1,0,1)); put(81, omul(e,1,0,2), omul(e,1,0,3)); put(82, omul(e,1,1,0), omul(e,1,1,1))
        put(83, omul(e,1,1,2), omul(e,1,1,3)); put(84, ocv(e,1,0,0), ocv(e,1,0,1)); put(85, ocv(e,1,1,0), ocv(e,1,1,1))
        put(93, ost(e, 1))
    if QK and (i & 1) and i + 1 < NB: put(100, qtoggle(i+1))
    out = []
    for n in range(136):
        if M[n] is not None: out.append(M[n])
        out += G[n]
    return out

def setup():
    o = []
    A = lambda t, rd=(), wr=(), prod=None: o.append(valu(t, rd, wr, prod=prod) if t.startswith("v_") else salu(t, rd, wr))
    A("s_load_dwordx4 s[4:7], s[0:1], 0"); A("s_load_dwordx4 s[24:27], s[0:1], 16")
    A(f"v_lshrrev_b32 v{vT[0]}, 6, v0", ["v0"], [f"v{vT[0]}"])
    A(f"v_and_b32 v0, 63, v0", ["v0"], ["v0"])
    A(f"v_readfirstlane_b32 s{sW}, v{vT[0]}", [f"v{vT[0]}"], [f"s{sW}"])
    A(f"v_lshlrev_b32 v{vL16}, 4, v0", ["v0"], [f"v{vL16}"])
    A(f"v_and_b32 v{vT[1]}, 15, v0", ["v0"], [f"v{vT[1]}"])
    A(f"v_lshrrev_b32 v{vT[2]}, 4, v0", ["v0"], [f"v{vT[2]}"])
    A(f"s_mul_i32 s{sT}, s2, 0x5c000"); A(f"s_lshl_b32 s{sT2}, s2, 17")
    A(f"s_mov_b32 s{sQ+2}, 0x5c000"); A(f"s_mov_b32 s{sQ+3}, 0x20000"); A(f"s_mov_b32 s{sK+2}, 0x20000"); A(f"s_mov_b32 s{sK+3}, 0x20000")
    A(f"s_mov_b32 s{sV+2}, 0x20000"); A(f"s_mov_b32 s{sV+3}, 0x20000"); A(f"s_mov_b32 s{sO+2}, 0x5c000"); A(f"s_mov_b32 s{sO+3}, 0x20000")
    o.append(raw("s_waitcnt lgkmcnt(0)"))
    A(f"s_add_u32 s{sK}, s6, s{sT2}"); A(f"s_addc_u32 s{sK+1}, s7, 0")
    A(f"s_add_u32 s{sQ}, s4, s{sT}"); A(f"s_addc_u32 s{sQ+1}, s5, 0")
    A(f"s_add_u32 s{sV}, s24, s{sT2}"); A(f"s_addc_u32 s{sV+1}, s25, 0")
    A(f"s_add_u32 s{sO}, s26, s{sT}"); A(f"s_addc_u32 s{sO+1}, s27, 0")
    return o
def prologue():
    o = setup()
    A = lambda t, rd=(), wr=(), prod=None: o.append(valu(t, rd, wr, prod=prod) if t.startswith("v_") else salu(t, rd, wr))
    q, g = f"v{vT[1]}", f"v{vT[2]}"
    t0, t3 = f"v{vT[0]}", f"v{vT[3]}"
    W = f"s{sW}"
    A(f"s_lshl_b32 s{sT}, {W}, 15", [W])
    A(f"v_lshlrev_b32 {t0}, 8, {q}", [q], [t0])
    A(f"v_lshl_add_u32 {t0}, {g}, 4, {t0}", [g, t0], [t0])
    for t in range(8):
        for j in range(4):
            o.append(I("vmem", f"buffer_load_dwordx4 {rng('a', aK(t, j), 4)}, {t0}, s[{sK}:{sK+3}], s{sT} offen offset:{64*j}",
                       rd=[t0], wr=R("a", aK(t, j), 4), prod=tagmap(R("a", aK(t, j), 4), ("Kraw", t, j))))
        if t < 7: A(f"s_add_u32 s{sT}, s{sT}, 0x1000")
    A(f"s_lshr_b32 s{sT}, {W}, 1", [W]); A(f"s_lshl_b32 s{sT}, s{sT}, 12"); A(f"s_and_b32 s{sT2}, {W}, 1", [W]); A(f"s_lshl_b32 s{sT2}, s{sT2}, 7")
    A(f"s_add_u32 s{sT}, s{sT}, s{sT2}")
    A(f"v_add_u32 v{vQd}, s{sT}, {t0}", [t0], [f"v{vQd}"])
    A(f"s_lshl_b32 s{sT}, {W}, 6", [W])
    A(f"v_add_u32 v{vO}, s{sT}, {t0}", [t0], [f"v{vO}"])
    x = salu(f"s_mov_b32 s{sQoff}, 0", [], [f"s{sQoff}"]); x.prod = {f"s{sQoff}": ("qoff", 0)}; o.append(x)
    x = salu(f"s_lshl_b32 s{sM}, {W}, 11", [W], [f"s{sM}"]); x.prod = {f"s{sM}": ("sM", 0)}; o.append(x)
    o += [m0set(0, 0), nop(0), qdma(0, 0), m0set(0, 1), nop(0), qdma(0, 1)]
    A(f"v_lshlrev_b32 {t3}, 2, {g}", [g], [t3]); A(f"v_xor_b32 {t3}, {q}, {t3}", [q, t3], [t3]); A(f"v_lshlrev_b32 {t3}, 4, {t3}", [t3], [t3])
    A(f"v_lshl_add_u32 {t3}, {g}, 8, {t3}", [g, t3], [t3])
    A(f"s_lshl_b32 s{sT}, {W}, 15", [W])
    for n4 in range(8):
        A(f"s_add_u32 m0, s{sT}, {VST}", [], ["m0"]); o.append(nop(0))
        for n in range(4):
            o.append(I("vmem", f"buffer_load_dwordx4 {t3}, s[{sV}:{sV+3}], s{sT} offen offset:{1024*n} lds", rd=[t3, "m0"], ldsw=[(("V", n4, n), "V")]))
        if n4 < 7: A(f"s_add_u32 s{sT}, s{sT}, 0x1000")
    for b in range(1, 4):
        o += q_next(b) + [m0set(b, 0), nop(0), qdma(b, 0), m0set(b, 1), nop(0), qdma(b, 1)]
    A(f"v_mov_b32 v{vQrd}, v{vL16}", [f"v{vL16}"], [f"v{vQrd}"], prod={f"v{vQrd}": ("qrd", 0)})
    A(f"s_lshl_b32 s{sT}, {W}, 13", [W]); A(f"s_add_u32 s{sT2}, s{sT}, {PB}")
    A(f"v_add_u32 v{vPw}, s{sT2}, v{vL16}", [f"v{vL16}"], [f"v{vPw}"])
    for k in range(3):
        A(f"s_add_u32 s{sT}, s{sT}, 0x2000"); A(f"s_and_b32 s{sT}, s{sT}, 0x7fff"); A(f"s_add_u32 s{sT2}, s{sT}, {PB}")
        A(f"v_add_u32 v{vPr[k]}, s{sT2}, v{vL16}", [f"v{vL16}"], [f"v{vPr[k]}"])
    A(f"v_lshlrev_b32 v{vLr}, 5, {q}", [q], [f"v{vLr}"]); A(f"v_add_u32 v{vLr}, {LB}, v{vLr}", [f"v{vLr}"], [f"v{vLr}"])
    A(f"s_lshl_b32 s{sT}, {W}, 2", [W]); A(f"v_add_u32 v{vLw}, s{sT}, v{vLr}", [f"v{vLr}"], [f"v{vLw}"])
    for r in range(4): A(f"v_mov_b32 v{vOnes+r}, 0x3f803f80", [], [f"v{vOnes+r}"], prod={f"v{vOnes+r}": ("ones", r)})
    A(f"v_mov_b32 v{vMax}, 1.0", [], [f"v{vMax}"]); A(f"v_mov_b32 v{vMin}, 1.0", [], [f"v{vMin}"])
    x = salu(f"s_mov_b32 s{sO0}, {(-0x2000) & 0xffffffff:#x}", [], [f"s{sO0}"]); x.prod = {f"s{sO0}": ("so", -1, 0)}; o.append(x)
    x = salu(f"s_mov_b32 s{sO1}, {(-0x1000) & 0xffffffff:#x}", [], [f"s{sO1}"]); x.prod = {f"s{sO1}": ("so", -1, 1)}; o.append(x)
    A(f"s_mov_b32 s{sC}, {CSC:#x}"); A(f"s_mov_b32 s{sMask}, 0xffff0000")
    vVa = vOut[0]; x1, x2 = f"v{vOut[0]+1}", f"v{vOut[0]+2}"
    A(f"v_lshrrev_b32 {x1}, 2, v0", ["v0"], [x1])
    A(f"v_and_b32 {x2}, 3, {x1}", [x1], [x2]); A(f"v_xor_b32 {x2}, {W}, {x2}", [x2, W], [x2]); A(f"v_lshlrev_b32 {x2}, 6, {x2}", [x2], [x2])
    A(f"v_lshl_add_u32 {x1}, {x1}, 8, {x2}", [x1, x2], [x1])
    A(f"v_and_b32 {x2}, 3, v0", ["v0"], [x2]); A(f"v_lshl_add_u32 {x1}, {x2}, 4, {x1}", [x1, x2], [x1])
    tmp = vPs[0][0]
    for t in range(8):
        for j in range(4):
            regs = R("a", aK(t, j), 4)
            o.append(wait_vm(regs))
            for r in range(4): A(f"v_accvgpr_read_b32 v{tmp+r}, a{aK(t,j)+r}", [regs[r]], [f"v{tmp+r}"])
            for r in range(4): A(f"v_lshlrev_b32 v{tmp+4+r}, 16, v{tmp+r}", [f"v{tmp+r}"], [f"v{tmp+4+r}"])
            for r in range(4): A(f"v_and_b32 v{tmp+r}, s{sMask}, v{tmp+r}", [f"v{tmp+r}"], [f"v{tmp+r}"])
            for r in range(8): A(f"v_mul_f32 v{tmp+r}, s{sC}, v{tmp+r}", [f"v{tmp+r}"], [f"v{tmp+r}"])
            for r in range(4): A(f"v_cvt_pk_bf16_f32 v{tmp+r}, v{tmp+4+r}, v{tmp+r}", [f"v{tmp+r}", f"v{tmp+4+r}"], [f"v{tmp+r}"])
            for r in range(4): A(f"v_accvgpr_write_b32 a{aK(t,j)+r}, v{tmp+r}", [f"v{tmp+r}"], [regs[r]], prod={regs[r]: (("K", t, j), r)})
    o.append(wait_vm([("w", ("V", 7, 3))])); o.append(barrier())
    A(f"s_lshl_b32 s{sT}, {W}, 15", [W])
    allV = [(("V", a, b), "V") for a in range(8) for b in range(4)]
    for k in range(4):
        A(f"s_add_u32 s{sT2}, s{sT}, {VST}")
        A(f"v_add_u32 v{vVa}, s{sT2}, {x1}", [x1], [f"v{vVa}"])
        for c in range(4):
            for dt in range(2):
                for h in range(2):
                    d = aV(k, c, dt) + 2*h
                    o.append(I("dsr", f"ds_read_b64_tr_b16 a[{d}:{d+1}], v{vVa} offset:{c*8192 + h*4096 + 8*dt}", rd=[f"v{vVa}"], wr=R("a", d, 2),
                               prod={f"a{d}": (("V", k, c, dt), 2*h), f"a{d+1}": (("V", k, c, dt), 2*h+1)}, ldsr=allV))
        A(f"s_add_u32 s{sT}, s{sT}, 0x8000"); A(f"s_and_b32 s{sT}, s{sT}, 0x1ffff")
    for j in range(4): o.append(qr(0, 0, j))
    o.append(wait_lgkm("all"))
    o.append(barrier())
    return o

def slow_block(i):
    o = []
    S0 = 128
    assert vPs[0][0] >= 0
    Sx = lambda T: SL + 4*T
    o.append(barrier())
    o += [m0set(i, 0), nop(0), qdma(i, 0), m0set(i, 1), nop(0), qdma(i, 1), wait_vm("all"), barrier()]
    for u in range(2):
        for j in range(4): o.append(qr(i, u, j))
    o.append(wait_lgkm("all"))
    for T in range(16):
        for j in range(4): o.append(qk(i, T, j, S=Sx(T)))
    m = [vLs[0], vLs[1]]
    for u in range(2):
        regs = [Sx(8*u + t) + r for t in range(8) for r in range(4)]
        o.append(valu(f"v_max_f32 v{m[u]}, v{regs[0]}, v{regs[1]}", [f"v{regs[0]}", f"v{regs[1]}"], [f"v{m[u]}"]))
        for x in range(2, 32, 2):
            o.append(valu(f"v_max3_f32 v{m[u]}, v{m[u]}, v{regs[x]}, v{regs[x+1]}", [f"v{m[u]}", f"v{regs[x]}", f"v{regs[x+1]}"], [f"v{m[u]}"]))
    o.append(I("dsw", f"ds_write2_b32 v{vT[0]}, v{m[0]}, v{m[1]} offset0:0 offset1:16", rd=[f"v{vT[0]}", f"v{m[0]}", f"v{m[1]}"], ldsw=[("MX", ("MX", i))]))
    o += [wait_lgkm("all"), barrier()]
    X = vPs[0][0]
    for x in range(8):
        o.append(I("dsr", f"ds_read_b128 {rng('v', X+4*x, 4)}, v{vT[1]} offset:{16*x}", rd=[f"v{vT[1]}"], wr=R("v", X+4*x, 4), ldsr=[("MX", ("MX", i))]))
    o.append(wait_lgkm("all"))
    for u in range(2):
        regs = [X + 16*u + x for x in range(16)]
        o.append(valu(f"v_max_f32 v{m[u]}, v{regs[0]}, v{regs[1]}", [f"v{regs[0]}", f"v{regs[1]}"], [f"v{m[u]}"]))
        for x in range(2, 16, 2):
            o.append(valu(f"v_max3_f32 v{m[u]}, v{m[u]}, v{regs[x]}, v{regs[x+1]}", [f"v{m[u]}", f"v{regs[x]}", f"v{regs[x+1]}"], [f"v{m[u]}"]))
    for T in range(16):
        for r in range(4):
            v = f"v{Sx(T)+r}"
            o.append(valu(f"v_sub_f32 {v}, {v}, v{m[T//8]}", [v, f"v{m[T//8]}"], [v], exp={v: (("S", i, T, 3), r)}, prod={v: (("S", i, T, 3), r)}))
        for r in range(4): o.append(ex(i, T, r, S=Sx(T)))
        o.append(cv(i, T, 0, S=Sx(T))); o.append(cv(i, T, 1, S=Sx(T)))
        if T % 2: o.append(pw(i, (T % 8)//2, T//8))
    for u in range(2):
        for c in range(4): o.append(ones(i, u, c))
    o += [lw(i), wait_lgkm("all"), barrier(), lr(i, 0), lr(i, 1)]
    for u in range(2):
        for dt in range(2):
            for c in range(4): o.append(pv(i, 0, c, u, dt))
    for mm in range(6):
        for c in range(4): o.append(pr(i, mm, c))
        o.append(wait_lgkm("all"))
        for dt in range(2):
            for c in range(4): o.append(pv(i, mm//2 + 1, c, mm % 2, dt))
    for u in range(2):
        o += [ladd(i, u, 0), ladd(i, u, 1), ladd(i, u, 2), rcp(i, u), so_next(i, u)]
        for dt in range(2):
            for r in range(4): o.append(omul(i, u, dt, r))
            o += [ocv(i, u, dt, 0), ocv(i, u, dt, 1)]
        o.append(ost(i, u))
    a = salu(f"s_add_u32 s{sQoff}, s{sQoff}, 0x2000", [f"s{sQoff}"], [f"s{sQoff}", "scc"]); a.prod = {f"s{sQoff}": ("qoff", i+4)}
    o.append(a)
    return o
SL = 192
def slow_setup():
    o = []
    A = lambda t, rd=(), wr=(), prod=None: o.append(valu(t, rd, wr, prod=prod) if t.startswith("v_") else salu(t, rd, wr))
    W = f"s{sW}"
    o.append(wait_both("all", "all"))
    x = salu(f"s_mov_b32 s{sQoff}, 0", [], [f"s{sQoff}"]); x.prod = {f"s{sQoff}": ("qoff", 100)}; o.append(x)
    x = salu(f"s_lshl_b32 s{sM}, {W}, 11", [W], [f"s{sM}"]); x.prod = {f"s{sM}": ("sM", 0)}; o.append(x)
    A(f"v_mov_b32 v{vQrd}, v{vL16}", [f"v{vL16}"], [f"v{vQrd}"], prod={f"v{vQrd}": ("qrd", 0)})
    x = salu(f"s_mov_b32 s{sO0}, {(-0x2000) & 0xffffffff:#x}", [], [f"s{sO0}"]); x.prod = {f"s{sO0}": ("so", 99, 0)}; o.append(x)
    x = salu(f"s_mov_b32 s{sO1}, {(-0x1000) & 0xffffffff:#x}", [], [f"s{sO1}"]); x.prod = {f"s{sO1}": ("so", 99, 1)}; o.append(x)
    A(f"v_and_b32 v{vT[1]}, 15, v0", ["v0"], [f"v{vT[1]}"]); A(f"v_lshlrev_b32 v{vT[1]}, 7, v{vT[1]}", [f"v{vT[1]}"], [f"v{vT[1]}"])
    A(f"v_add_u32 v{vT[1]}, {MXB}, v{vT[1]}", [f"v{vT[1]}"], [f"v{vT[1]}"])
    A(f"v_lshrrev_b32 v{vT[0]}, 4, v0", ["v0"], [f"v{vT[0]}"]); A(f"s_lshl_b32 s{sT}, {W}, 2", [W])
    A(f"v_add_u32 v{vT[0]}, s{sT}, v{vT[0]}", [f"v{vT[0]}"], [f"v{vT[0]}"])
    A(f"v_lshl_add_u32 v{vT[0]}, v{vT[0]}, 2, v{vT[1]}", [f"v{vT[0]}", f"v{vT[1]}"], [f"v{vT[0]}"])
    A(f"s_mov_b32 s{sCnt}, {NB}")
    return o

def keyed(name, lst):
    for n, x in enumerate(lst): x.key = (name, n)
    return lst

def generate(path, force_slow=False, skip_fast=False):
    pieces = {}
    trace = []
    def inst(name, lst):
        keyed(name, lst)
        if name in pieces:
            assert [x.text for x in pieces[name]] == [x.text for x in lst], name
        else: pieces[name] = lst
        trace.extend(lst)
    inst("pro", prologue())
    if not skip_fast:
        inst("it0", iteration(0, PV=False, EP=False))
        inst("it1", iteration(1, EP=False) + [salu(f"s_mov_b32 s{sCnt}, {(NB-2)//2 - 1}")])
        for i in range(2, NB - 2):
            body = iteration(i)
            if i & 1: body += [salu(f"s_sub_u32 s{sCnt}, s{sCnt}, 1"), salu(f"s_cmp_lg_u32 s{sCnt}, 0"), salu("s_cbranch_scc1 L_loop")]
            inst("odd" if i & 1 else "even", body)
        inst("it44", iteration(NB-2, DMA=False))
        inst("it45", iteration(NB-1, DMA=False))
        inst("it46", iteration(NB, QK=False, DMA=False))
        inst("it47", iteration(NB+1, QK=False, PV=False, DMA=False))
        chkc = [valu(f"v_cmp_nge_f32 vcc, s{sT}, v{vMax}", [f"v{vMax}"], ["vcc"]),
                valu(f"v_cmp_nle_f32 s[38:39], s{sT2}, v{vMin}", [f"v{vMin}"], ["s38", "s39"]),
                nop(4), salu("s_or_b64 vcc, vcc, s[38:39]", ["vcc", "s38"]),
                salu("s_cbranch_scc0 L_end" if not force_slow else "s_nop 0")]
        inst("chk", [salu(f"s_mov_b32 s{sT}, {LHI:#x}"), salu(f"s_mov_b32 s{sT2}, {LLO:#x}")] + chkc)
    inst("slow0", slow_setup())
    for i in (100, 104, 108):
        b = slow_block(i)
        for x in b:
            for r, tg in list(x.exp.items()):
                if isinstance(tg, tuple) and tg[0] == "so" and x.text.startswith("s_add"): del x.exp[r]
                if isinstance(tg, tuple) and tg[0] == "qrd": del x.exp[r]
        b += [salu(f"s_sub_u32 s{sCnt}, s{sCnt}, 1"), salu(f"s_cmp_lg_u32 s{sCnt}, 0"), salu("s_cbranch_scc1 L_slow")]
        inst("slow", b)
    waits, nops, errs = resolve(trace, {"pro", "it0", "it46", "it47", "chk", "slow0", "slow"})
    if errs:
        for e in errs[:40]: print("ERR", e)
        raise SystemExit(f"{len(errs)} checker errors")
    ref = open("standalone__gqa_softmax__near_ridge.s.ref").read().split("\n")
    hdr = [l for l in ref if l.startswith(";") and "@launch" not in l]
    L = hdr + [f"; @launch grid=(256,1,1) block=(256,1,1) lds={LDS}", '.amdgcn_target "amdgcn-amd-amdhsa--gfx950"', ".text", f".globl {KN}", ".p2align 8",
         f".type {KN},@function", f"{KN}:", "    s_cmp_ge_u32 s2, 0x100", "    s_cbranch_scc1 L_end"]
    order = ["pro"] + ([] if skip_fast else ["it0", "it1", "even", "odd", "it44", "it45", "it46", "it47", "chk"]) + ["slow0", "slow"]
    for name in order:
        if name == "even": L += ["    .p2align 6" , "L_loop:"] if False else ["L_loop:"]
        if name == "slow": L.append("L_slow:")
        L.append(f"; ---- {name}")
        for x in pieces[name]: L += emit(x, waits, nops)
    L += ["L_end:", "    s_endpgm", '.section .rodata,"a"', ".p2align 6", f".amdhsa_kernel {KN}", "  .amdhsa_next_free_vgpr 512", "  .amdhsa_next_free_sgpr 102",
          "  .amdhsa_accum_offset 256", "  .amdhsa_group_segment_fixed_size 0", "  .amdhsa_kernarg_size 48", "  .amdhsa_user_sgpr_count 2",
          "  .amdhsa_user_sgpr_kernarg_segment_ptr 1", "  .amdhsa_system_sgpr_workgroup_id_x 1", ".end_amdhsa_kernel", ""]
    open(path, "w").write("\n".join(L))
    build(path)
    return nops

if __name__ == "__main__":
    print("VTOP", VTOP)
    generate("k_slow.s", skip_fast=True)
    n = generate("k1.s")
    print({k: v for k, v in n.items() if k[0] not in ("slow", "pro")})
```

```python
import sys, struct, math
from asmgen import *
from build import build
KN = "standalone__gqa_softmax__near_ridge_kernel"
NB = 46
QB = 0
PB = 32768
LB = 98304
MXB = 99328
VST = 32768
LDS = 163840
sQ, sK, sV, sO = 8, 12, 16, 20
sW = 28; sQoff = 29; sM = 30; sO0 = 31; sO1 = 32; sCnt = 33; sT = 34; sC = 35; sMask = 36; sT2 = 37
class Alloc:
    def __init__(s, start): s.p = start
    def get(s, n, al=4):
        s.p = (s.p + al - 1) // al * al; r = s.p; s.p += n; assert s.p <= 256, "out of vgprs"; return r
al = Alloc(1)
vL16 = al.get(1,1); vQrd = al.get(1,1); vPw = al.get(1,1); vPr = [al.get(1,1) for _ in range(3)]
vLw = al.get(1,1); vLr = al.get(1,1); vQd = al.get(1,1); vO = al.get(1,1); vMax = al.get(1,1); vMin = al.get(1,1)
vT = [al.get(1,1) for _ in range(4)]
vLs = [al.get(1,1) for _ in range(2)]; vRc = [al.get(1,1) for _ in range(2)]
vOnes = al.get(4)
vQ = [[al.get(4) for j in range(4)] for u in range(2)]
vS = [al.get(4) for _ in range(4)]
vPo = {(c,u): al.get(4) for u in range(2) for c in range(4)}
vPoAlt = al.get(4)
vPs = [[al.get(4) for c in range(4)] for k in range(3)]
vOa = [[[al.get(4) for dt in range(2)] for u in range(2)] for par in range(2)]
vLa = [al.get(4) for u in range(2)]
vLd = [al.get(4) for u in range(2)]
vOut = [al.get(4) for u in range(2)]
VTOP = al.p
def aK(t, j): return 16*t + 4*j
def aV(k, c, dt): return 128 + 32*k + 8*c + 4*dt
def Po(c, u, i): return vPoAlt if (c, u) == (0, 0) and (i & 1) else vPo[(c, u)]
def f32(x): return struct.unpack("<I", struct.pack("<f", x))[0]
CSC = f32(math.log2(math.e) / math.sqrt(128.0))
LHI = f32(2.0**40); LLO = f32(2.0**-40)

def qk(i, T, j, S=None):
    u, t = T // 8, T % 8
    S = vS[T % 4] if S is None else S
    return mfma(S, ("a", aK(t, j)), vQ[u][j], c=(j > 0), ta=("K", t, j), tb=("Q", i, u, j),
                tc=("S", i, T, j-1), td=("S", i, T, j))
def ex(i, T, r, S=None):
    S = vS[T % 4] if S is None else S
    v = f"v{S+r}"
    return valu(f"v_exp_f32 {v}, {v}", [v], [v], exp={v: (("S", i, T, 3), r)}, prod={v: (("E", i, T), r)}, trans=True)
def cv(i, T, h, S=None):
    S = vS[T % 4] if S is None else S
    u, c, half = T // 8, (T % 8) // 2, T % 2
    d = Po(c, u, i) + 2*half + h
    a, b = f"v{S+2*h}", f"v{S+2*h+1}"
    return valu(f"v_cvt_pk_bf16_f32 v{d}, {a}, {b}", [a, b], [f"v{d}"],
                exp={a: (("E", i, T), 2*h), b: (("E", i, T), 2*h+1)}, prod={f"v{d}": (("P", i, 0, c, u), 2*half+h)})
def pw(i, c, u):
    d = Po(c, u, i); buf = i & 1
    return I("dsw", f"ds_write_b128 v{vPw}, {rng('v', d, 4)} offset:{buf*32768 + (u*4+c)*1024}",
             rd=[f"v{vPw}"] + R("v", d, 4), exp=tagmap(R("v", d, 4), ("P", i, 0, c, u)),
             ldsw=[(("P", buf, c, u), ("P", i))])
def pr(i, m, c):
    k, u = m // 2, m % 2; buf = i & 1; d = vPs[m % 3][c]
    return I("dsr", f"ds_read_b128 {rng('v', d, 4)}, v{vPr[k]} offset:{buf*32768 + (u*4+c)*1024}",
             rd=[f"v{vPr[k]}"], wr=R("v", d, 4), prod=tagmap(R("v", d, 4), ("P", i, k+1, c, u)),
             ldsr=[(("P", buf, c, u), ("P", i))])
def qr(i, u, j):
    d = vQ[u][j]
    return I("dsr", f"ds_read_b128 {rng('v', d, 4)}, v{vQrd} offset:{(i & 1)*8192 + (u*4+j)*1024}",
             rd=[f"v{vQrd}"], wr=R("v", d, 4), exp={f"v{vQrd}": ("qrd", (i >> 1) & 1)},
             prod=tagmap(R("v", d, 4), ("Q", i, u, j)), ldsr=[(("Q", i & 3, (u*4+j) & 1), ("Q", i))])
def pv(i, k, c, u, dt):
    d = vOa[i & 1][u][dt]
    b = Po(c, u, i) if k == 0 else vPs[((k-1)*2 + u) % 3][c]
    n = k*4 + c
    return mfma(d, ("a", aV(k, c, dt)), b, c=(n > 0), ta=("V", k, c, dt), tb=("P", i, k, c, u),
                tc=("O", i, u, dt, n-1), td=("O", i, u, dt, n))
def ones(i, u, c):
    return mfma(vLa[u], ("v", vOnes), Po(c, u, i), c=(c > 0), ta="ones", tb=("P", i, 0, c, u),
                tc=("L", i, u, c-1), td=("L", i, u, c))
def lw(i):
    buf = i & 1
    return I("dsw", f"ds_write2_b32 v{vLw}, v{vLa[0]}, v{vLa[1]} offset0:{buf*128} offset1:{buf*128+4}",
             rd=[f"v{vLw}", f"v{vLa[0]}", f"v{vLa[1]}"],
             exp={f"v{vLa[0]}": (("L", i, 0, 3), 0), f"v{vLa[1]}": (("L", i, 1, 3), 0)}, ldsw=[(("L", buf), ("L", i))])
def lr(i, u):
    buf = i & 1; d = vLd[u]
    return I("dsr", f"ds_read_b128 {rng('v', d, 4)}, v{vLr} offset:{buf*512 + u*16}", rd=[f"v{vLr}"], wr=R("v", d, 4),
             prod=tagmap(R("v", d, 4), ("LP", i, u)), ldsr=[(("L", buf), ("L", i))])
def ladd(i, u, s):
    d = vLd[u]
    if s == 0: return valu(f"v_add_f32 v{d}, v{d}, v{d+1}", R("v", d, 2), [f"v{d}"], exp={f"v{d}": (("LP", i, u), 0), f"v{d+1}": (("LP", i, u), 1)}, prod={f"v{d}": ("LA", i, u)})
    if s == 1: return valu(f"v_add_f32 v{d+2}, v{d+2}, v{d+3}", R("v", d+2, 2), [f"v{d+2}"], exp={f"v{d+2}": (("LP", i, u), 2), f"v{d+3}": (("LP", i, u), 3)}, prod={f"v{d+2}": ("LB", i, u)})
    return valu(f"v_add_f32 v{vLs[u]}, v{d}, v{d+2}", [f"v{d}", f"v{d+2}"], [f"v{vLs[u]}"], exp={f"v{d}": ("LA", i, u), f"v{d+2}": ("LB", i, u)}, prod={f"v{vLs[u]}": ("LS", i, u)})
def rcp(i, u):
    return valu(f"v_rcp_f32 v{vRc[u]}, v{vLs[u]}", [f"v{vLs[u]}"], [f"v{vRc[u]}"], exp={f"v{vLs[u]}": ("LS", i, u)}, prod={f"v{vRc[u]}": ("RC", i, u)}, trans=True)
def chk(i, mx):
    v = vMax if mx else vMin
    return valu(f"v_{'max' if mx else 'min'}3_f32 v{v}, v{v}, v{vLs[0]}, v{vLs[1]}", [f"v{v}", f"v{vLs[0]}", f"v{vLs[1]}"], [f"v{v}"],
                exp={f"v{vLs[0]}": ("LS", i, 0), f"v{vLs[1]}": ("LS", i, 1)})
def omul(i, u, dt, r):
    v = f"v{vOa[i & 1][u][dt] + r}"
    return valu(f"v_mul_f32 {v}, {v}, v{vRc[u]}", [v, f"v{vRc[u]}"], [v], exp={v: (("O", i, u, dt, 15), r), f"v{vRc[u]}": ("RC", i, u)}, prod={v: (("N", i, u, dt), r)})
def ocv(i, u, dt, h):
    s = vOa[i & 1][u][dt] + 2*h; d = vOut[u] + 2*dt + h
    return valu(f"v_cvt_pk_bf16_f32 v{d}, v{s}, v{s+1}", R("v", s, 2), [f"v{d}"],
                exp={f"v{s}": (("N", i, u, dt), 2*h), f"v{s+1}": (("N", i, u, dt), 2*h+1)}, prod={f"v{d}": (("OUT", i, u), 2*dt+h)})
STFLAG = ""
def ost(i, u):
    so = sO0 if u == 0 else sO1
    return I("vmem", f"buffer_store_dwordx4 {rng('v', vOut[u], 4)}, v{vO}, s[{sO}:{sO+3}], s{so} offen{STFLAG}",
             rd=R("v", vOut[u], 4) + [f"v{vO}", f"s{so}"], exp={**tagmap(R("v", vOut[u], 4), ("OUT", i, u)), f"s{so}": ("so", i, u)})
def so_next(i, u):
    so = sO0 if u == 0 else sO1
    x = salu(f"s_add_u32 s{so}, s{so}, 0x2000", [f"s{so}"], [f"s{so}", "scc"]); x.exp = {f"s{so}": ("so", i-1, u)}; x.prod = {f"s{so}": ("so", i, u)}; return x
QFLAG = ""
def m0set(i, h):
    x = salu(f"s_mov_b32 m0, s{sM}" if h == 0 else f"s_add_u32 m0, s{sM}, {1024-64}", [f"s{sM}"], ["m0"] + (["scc"] if h else []))
    x.exp = {f"s{sM}": ("sM", i & 3)}; x.prod = {"m0": ("m0", i & 3, h)}; return x
def qdma(i, h):
    return I("vmem", f"buffer_load_dwordx4 v{vQd}, s[{sQ}:{sQ+3}], s{sQoff} offen{' offset:64' if h else ''}{QFLAG} lds",
             rd=[f"v{vQd}", f"s{sQoff}", "m0"], exp={"m0": ("m0", i & 3, h), f"s{sQoff}": ("qoff", i)}, ldsw=[(("Q", i & 3, h), ("Q", i))])
def q_next(i):
    a = salu(f"s_add_u32 s{sQoff}, s{sQoff}, 0x2000", [f"s{sQoff}"], [f"s{sQoff}", "scc"]); a.exp = {f"s{sQoff}": ("qoff", i-1)}; a.prod = {f"s{sQoff}": ("qoff", i)}
    b = salu(f"s_add_u32 s{sM}, s{sM}, 0x2000", [f"s{sM}"], [f"s{sM}", "scc"]); b.exp = {f"s{sM}": ("sM", (i-1) & 3)}; b.prod = {f"s{sM}": ("sM'", i & 3)}
    c = salu(f"s_and_b32 s{sM}, s{sM}, 0x7fff", [f"s{sM}"], [f"s{sM}", "scc"]); c.exp = {f"s{sM}": ("sM'", i & 3)}; c.prod = {f"s{sM}": ("sM", i & 3)}
    return [a, b, c]
def qtoggle(i):
    v = f"v{vQrd}"
    return valu(f"v_xor_b32 {v}, 0x4000, {v}", [v], [v], exp={v: ("qrd", ((i >> 1) & 1) ^ 1)}, prod={v: ("qrd", (i >> 1) & 1)})

def iteration(i, QK=True, PV=True, EP=True, DMA=True):
    M = []
    pvseq = [(k, u, dt) for k in range(4) for u in range(2) for dt in range(2)]
    for T in range(16):
        M += [qk(i, T, j) if QK else None for j in range(4)]
        if T == 0: M += [ones(i-1, 1, c) if PV else None for c in range(4)]
        if T == 8: M += [ones(i, 0, c) if QK else None for c in range(4)]
        k, u, dt = pvseq[T]
        M += [pv(i-1, k, c, u, dt) if PV else None for c in range(4)]
    assert len(M) == 136
    G = [[] for _ in range(136)]
    def put(g, *ins):
        for x in ins:
            if x is not None: G[g].append(x)
    Rr = [6, 18, 26, 34, 42, 50, 58, 66, 74, 86, 94, 102, 110, 118, 126, 134]
    cg = {T: (Rr[T]+4, Rr[T]+5) for T in range(16)}
    cg[0] = (11, 12)
    rd = {}
    if QK:
        for j, g in enumerate((2, 3, 11, 12)): rd[g] = qr(i, 1, j)
    if QK and i + 1 < NB:
        for j, g in enumerate((114, 115, 122, 123)): rd[g] = qr(i+1, 0, j)
    if PV:
        slots = [17, 22, 23, 25, 30, 31, 38, 39, 46, 47, 54, 55, 62, 63, 70, 71, 78, 79, 90, 91, 98, 99, 106, 107]
        for n, g in enumerate(slots): rd[g] = pr(i-1, n // 4, n % 4)
        rd[130] = lr(i-1, 0); rd[131] = lr(i-1, 1)
    if PV:
        put(15, wait_both("all", [("w", ("Q", (i+1) & 3, 0)), ("w", ("Q", (i+1) & 3, 1))] if (QK and i+1 < NB) else None))
        put(16, barrier())
        for m, g in enumerate((37, 53, 75, 89, 105, 121)): put(g, wait_lgkm(sum((R("v", vPs[m % 3][c], 4) for c in range(4)), [])))
    elif QK:
        put(15, wait_both("all", [("w", ("Q", (i+1) & 3, 0)), ("w", ("Q", (i+1) & 3, 1))]))
        put(16, barrier())
    if QK:
        put(66, wait_lgkm(sum((R("v", vQ[1][j], 4) for j in range(4)), [])))
        if i + 1 < NB: put(135, wait_lgkm(sum((R("v", vQ[0][j], 4) for j in range(4)), [])))
    if EP:
        put(1, wait_lgkm(R("v", vLd[0], 4) + R("v", vLd[1], 4)))
        put(18, so_next(i-2, 0)); put(19, so_next(i-2, 1))
    if DMA:
        a, b, c = q_next(i+4)
        put(26, a); put(27, b); put(28, c); put(29, m0set(i+4, 0))
        put(32, qdma(i+4, 0)); put(34, m0set(i+4, 1)); put(41, qdma(i+4, 1))
    for g, x in rd.items(): put(g, x)
    if PV:
        put(0, ex(i-1, 15, 2)); put(1, ex(i-1, 15, 3)); put(2, cv(i-1, 15, 0)); put(3, cv(i-1, 15, 1)); put(4, pw(i-1, 3, 1))
        put(10, lw(i-1))
    if QK:
        for T in range(16):
            for r in range(4):
                if Rr[T] + r < 136: put(Rr[T]+r, ex(i, T, r))
            if T < 15:
                put(cg[T][0], cv(i, T, 0)); put(cg[T][1], cv(i, T, 1))
                if T % 2: put(cg[T][1]+1, pw(i, (T % 8)//2, T//8))
    if EP:
        e = i - 2
        put(5, ladd(e, 0, 0), ladd(e, 0, 1)); put(13, ladd(e, 1, 0), ladd(e, 1, 1)); put(14, ladd(e, 0, 2), ladd(e, 1, 2))
        put(15, rcp(e, 0)); put(16, rcp(e, 1)); put(17, chk(e, True)); put(25, chk(e, False))
        put(33, omul(e,0,0,0), omul(e,0,0,1)); put(48, omul(e,0,0,2), omul(e,0,0,3)); put(49, omul(e,0,1,0), omul(e,0,1,1))
        put(57, omul(e,0,1,2), omul(e,0,1,3)); put(64, ocv(e,0,0,0), ocv(e,0,0,1)); put(65, ocv(e,0,1,0), ocv(e,0,1,1))
        put(73, ost(e, 0))
        put(80, omul(e,1,0,0), omul(e,1,0,1)); put(81, omul(e,1,0,2), omul(e,1,0,3)); put(82, omul(e,1,1,0), omul(e,1,1,1))
        put(83, omul(e,1,1,2), omul(e,1,1,3)); put(84, ocv(e,1,0,0), ocv(e,1,0,1)); put(85, ocv(e,1,1,0), ocv(e,1,1,1))
        put(93, ost(e, 1))
    if QK and (i & 1) and i + 1 < NB: put(100, qtoggle(i+1))
    out = []
    for n in range(136):
        if M[n] is not None: out.append(M[n])
        out += G[n]
    return out

def setup():
    o = []
    A = lambda t, rd=(), wr=(), prod=None: o.append(valu(t, rd, wr, prod=prod) if t.startswith("v_") else salu(t, rd, wr))
    A("s_load_dwordx4 s[4:7], s[0:1], 0"); A("s_load_dwordx4 s[24:27], s[0:1], 16")
    A(f"v_lshrrev_b32 v{vT[0]}, 6, v0", ["v0"], [f"v{vT[0]}"])
    A(f"v_and_b32 v0, 63, v0", ["v0"], ["v0"])
    A(f"v_readfirstlane_b32 s{sW}, v{vT[0]}", [f"v{vT[0]}"], [f"s{sW}"])
    A(f"v_lshlrev_b32 v{vL16}, 4, v0", ["v0"], [f"v{vL16}"])
    A(f"v_and_b32 v{vT[1]}, 15, v0", ["v0"], [f"v{vT[1]}"])
    A(f"v_lshrrev_b32 v{vT[2]}, 4, v0", ["v0"], [f"v{vT[2]}"])
    A(f"s_mul_i32 s{sT}, s2, 0x5c000"); A(f"s_lshl_b32 s{sT2}, s2, 17")
    A(f"s_mov_b32 s{sQ+2}, 0x5c000"); A(f"s_mov_b32 s{sQ+3}, 0x20000"); A(f"s_mov_b32 s{sK+2}, 0x20000"); A(f"s_mov_b32 s{sK+3}, 0x20000")
    A(f"s_mov_b32 s{sV+2}, 0x20000"); A(f"s_mov_b32 s{sV+3}, 0x20000"); A(f"s_mov_b32 s{sO+2}, 0x5c000"); A(f"s_mov_b32 s{sO+3}, 0x20000")
    o.append(raw("s_waitcnt lgkmcnt(0)"))
    A(f"s_add_u32 s{sK}, s6, s{sT2}"); A(f"s_addc_u32 s{sK+1}, s7, 0")
    A(f"s_add_u32 s{sQ}, s4, s{sT}"); A(f"s_addc_u32 s{sQ+1}, s5, 0")
    A(f"s_add_u32 s{sV}, s24, s{sT2}"); A(f"s_addc_u32 s{sV+1}, s25, 0")
    A(f"s_add_u32 s{sO}, s26, s{sT}"); A(f"s_addc_u32 s{sO+1}, s27, 0")
    return o
def prologue(st):
    o = setup()
    A = lambda t, rd=(), wr=(), prod=None: o.append(valu(t, rd, wr, prod=prod) if t.startswith("v_") else salu(t, rd, wr))
    q, g = f"v{vT[1]}", f"v{vT[2]}"
    t0, t3 = f"v{vT[0]}", f"v{vT[3]}"
    W = f"s{sW}"
    A(f"s_lshl_b32 s{sT}, {W}, 15", [W])
    A(f"v_lshlrev_b32 {t0}, 8, {q}", [q], [t0])
    A(f"v_lshl_add_u32 {t0}, {g}, 4, {t0}", [g, t0], [t0])
    for t in range(8):
        for j in range(4):
            o.append(I("vmem", f"buffer_load_dwordx4 {rng('a', aK(t, j), 4)}, {t0}, s[{sK}:{sK+3}], s{sT} offen offset:{64*j}",
                       rd=[t0], wr=R("a", aK(t, j), 4), prod=tagmap(R("a", aK(t, j), 4), ("Kraw", t, j))))
        if t < 7: A(f"s_add_u32 s{sT}, s{sT}, 0x1000")
    A(f"s_lshr_b32 s{sT}, {W}, 1", [W]); A(f"s_lshl_b32 s{sT}, s{sT}, 12"); A(f"s_and_b32 s{sT2}, {W}, 1", [W]); A(f"s_lshl_b32 s{sT2}, s{sT2}, 7")
    A(f"s_add_u32 s{sT}, s{sT}, s{sT2}")
    A(f"v_add_u32 v{vQd}, s{sT}, {t0}", [t0], [f"v{vQd}"])
    A(f"s_lshl_b32 s{sT}, {W}, 6", [W])
    A(f"v_add_u32 v{vO}, s{sT}, {t0}", [t0], [f"v{vO}"])
    x = salu(f"s_mov_b32 s{sQoff}, 0", [], [f"s{sQoff}"]); x.prod = {f"s{sQoff}": ("qoff", 0)}; o.append(x)
    x = salu(f"s_lshl_b32 s{sM}, {W}, 11", [W], [f"s{sM}"]); x.prod = {f"s{sM}": ("sM", 0)}; o.append(x)
    o += [m0set(0, 0), nop(0), qdma(0, 0), m0set(0, 1), nop(0), qdma(0, 1)]
    A(f"v_lshlrev_b32 {t3}, 2, {g}", [g], [t3]); A(f"v_xor_b32 {t3}, {q}, {t3}", [q, t3], [t3]); A(f"v_lshlrev_b32 {t3}, 4, {t3}", [t3], [t3])
    A(f"v_lshl_add_u32 {t3}, {g}, 8, {t3}", [g, t3], [t3])
    A(f"s_lshl_b32 s{sT}, {W}, 15", [W])
    for n4 in range(8):
        A(f"s_add_u32 m0, s{sT}, {VST}", [], ["m0"]); o.append(nop(0))
        for n in range(4):
            o.append(I("vmem", f"buffer_load_dwordx4 {t3}, s[{sV}:{sV+3}], s{sT} offen offset:{1024*n} lds", rd=[t3, "m0"], ldsw=[(("V", n4, n), "V")]))
        if n4 < 7: A(f"s_add_u32 s{sT}, s{sT}, 0x1000")
    for b in range(1, 4):
        o += q_next(b) + [m0set(b, 0), nop(0), qdma(b, 0), m0set(b, 1), nop(0), qdma(b, 1)]
    A(f"v_mov_b32 v{vQrd}, v{vL16}", [f"v{vL16}"], [f"v{vQrd}"], prod={f"v{vQrd}": ("qrd", 0)})
    A(f"s_lshl_b32 s{sT}, {W}, 13", [W]); A(f"s_add_u32 s{sT2}, s{sT}, {PB}")
    A(f"v_add_u32 v{vPw}, s{sT2}, v{vL16}", [f"v{vL16}"], [f"v{vPw}"])
    for k in range(3):
        A(f"s_add_u32 s{sT}, s{sT}, 0x2000"); A(f"s_and_b32 s{sT}, s{sT}, 0x7fff"); A(f"s_add_u32 s{sT2}, s{sT}, {PB}")
        A(f"v_add_u32 v{vPr[k]}, s{sT2}, v{vL16}", [f"v{vL16}"], [f"v{vPr[k]}"])
    A(f"v_lshlrev_b32 v{vLr}, 5, {q}", [q], [f"v{vLr}"]); A(f"v_add_u32 v{vLr}, {LB}, v{vLr}", [f"v{vLr}"], [f"v{vLr}"])
    A(f"s_lshl_b32 s{sT}, {W}, 2", [W]); A(f"v_add_u32 v{vLw}, s{sT}, v{vLr}", [f"v{vLr}"], [f"v{vLw}"])
    for r in range(4): A(f"v_mov_b32 v{vOnes+r}, 0x3f803f80", [], [f"v{vOnes+r}"], prod={f"v{vOnes+r}": ("ones", r)})
    A(f"v_mov_b32 v{vMax}, 1.0", [], [f"v{vMax}"]); A(f"v_mov_b32 v{vMin}, 1.0", [], [f"v{vMin}"])
    x = salu(f"s_mov_b32 s{sO0}, {(-0x2000) & 0xffffffff:#x}", [], [f"s{sO0}"]); x.prod = {f"s{sO0}": ("so", -1, 0)}; o.append(x)
    x = salu(f"s_mov_b32 s{sO1}, {(-0x1000) & 0xffffffff:#x}", [], [f"s{sO1}"]); x.prod = {f"s{sO1}": ("so", -1, 1)}; o.append(x)
    A(f"s_mov_b32 s{sC}, {CSC:#x}"); A(f"s_mov_b32 s{sMask}, 0xffff0000")
    vVa = vOut[0]; x1, x2 = f"v{vOut[0]+1}", f"v{vOut[0]+2}"
    A(f"v_lshrrev_b32 {x1}, 2, v0", ["v0"], [x1])
    A(f"v_and_b32 {x2}, 3, {x1}", [x1], [x2]); A(f"v_xor_b32 {x2}, {W}, {x2}", [x2, W], [x2]); A(f"v_lshlrev_b32 {x2}, 6, {x2}", [x2], [x2])
    A(f"v_lshl_add_u32 {x1}, {x1}, 8, {x2}", [x1, x2], [x1])
    A(f"v_and_b32 {x2}, 3, v0", ["v0"], [x2]); A(f"v_lshl_add_u32 {x1}, {x2}, 4, {x1}", [x1, x2], [x1])
    tmp = vPs[0][0]
    for t in range(8):
        for j in range(4):
            regs = R("a", aK(t, j), 4)
            o.append(wait_vm(regs))
            for r in range(4): A(f"v_accvgpr_read_b32 v{tmp+r}, a{aK(t,j)+r}", [regs[r]], [f"v{tmp+r}"])
            for r in range(4): A(f"v_lshlrev_b32 v{tmp+4+r}, 16, v{tmp+r}", [f"v{tmp+r}"], [f"v{tmp+4+r}"])
            for r in range(4): A(f"v_and_b32 v{tmp+r}, s{sMask}, v{tmp+r}", [f"v{tmp+r}"], [f"v{tmp+r}"])
            for r in range(8): A(f"v_mul_f32 v{tmp+r}, s{sC}, v{tmp+r}", [f"v{tmp+r}"], [f"v{tmp+r}"])
            for r in range(4): A(f"v_cvt_pk_bf16_f32 v{tmp+r}, v{tmp+4+r}, v{tmp+r}", [f"v{tmp+r}", f"v{tmp+4+r}"], [f"v{tmp+r}"])
            for r in range(4): A(f"v_accvgpr_write_b32 a{aK(t,j)+r}, v{tmp+r}", [f"v{tmp+r}"], [regs[r]], prod={regs[r]: (("K", t, j), r)})
    o += st(1)
    o.append(wait_vm([("w", ("V", 7, 3))])); o.append(barrier())
    o += st(2)
    A(f"s_lshl_b32 s{sT}, {W}, 15", [W])
    allV = [(("V", a, b), "V") for a in range(8) for b in range(4)]
    for k in range(4):
        A(f"s_add_u32 s{sT2}, s{sT}, {VST}")
        A(f"v_add_u32 v{vVa}, s{sT2}, {x1}", [x1], [f"v{vVa}"])
        for c in range(4):
            for dt in range(2):
                for h in range(2):
                    d = aV(k, c, dt) + 2*h
                    o.append(I("dsr", f"ds_read_b64_tr_b16 a[{d}:{d+1}], v{vVa} offset:{c*8192 + h*4096 + 8*dt}", rd=[f"v{vVa}"], wr=R("a", d, 2),
                               prod={f"a{d}": (("V", k, c, dt), 2*h), f"a{d+1}": (("V", k, c, dt), 2*h+1)}, ldsr=allV))
        A(f"s_add_u32 s{sT}, s{sT}, 0x8000"); A(f"s_and_b32 s{sT}, s{sT}, 0x1ffff")
    for j in range(4): o.append(qr(0, 0, j))
    o.append(wait_lgkm("all"))
    o.append(barrier())
    return o

def slow_block(i):
    o = []
    S0 = 128
    assert vPs[0][0] >= 0
    Sx = lambda T: SL + 4*T
    o.append(barrier())
    o += [m0set(i, 0), nop(0), qdma(i, 0), m0set(i, 1), nop(0), qdma(i, 1), wait_vm("all"), barrier()]
    for u in range(2):
        for j in range(4): o.append(qr(i, u, j))
    o.append(wait_lgkm("all"))
    for T in range(16):
        for j in range(4): o.append(qk(i, T, j, S=Sx(T)))
    m = [vLs[0], vLs[1]]
    for u in range(2):
        regs = [Sx(8*u + t) + r for t in range(8) for r in range(4)]
        o.append(valu(f"v_max_f32 v{m[u]}, v{regs[0]}, v{regs[1]}", [f"v{regs[0]}", f"v{regs[1]}"], [f"v{m[u]}"]))
        for x in range(2, 32, 2):
            o.append(valu(f"v_max3_f32 v{m[u]}, v{m[u]}, v{regs[x]}, v{regs[x+1]}", [f"v{m[u]}", f"v{regs[x]}", f"v{regs[x+1]}"], [f"v{m[u]}"]))
    o.append(I("dsw", f"ds_write2_b32 v{vT[0]}, v{m[0]}, v{m[1]} offset0:0 offset1:16", rd=[f"v{vT[0]}", f"v{m[0]}", f"v{m[1]}"], ldsw=[("MX", ("MX", i))]))
    o += [wait_lgkm("all"), barrier()]
    X = vPs[0][0]
    for x in range(8):
        o.append(I("dsr", f"ds_read_b128 {rng('v', X+4*x, 4)}, v{vT[1]} offset:{16*x}", rd=[f"v{vT[1]}"], wr=R("v", X+4*x, 4), ldsr=[("MX", ("MX", i))]))
    o.append(wait_lgkm("all"))
    for u in range(2):
        regs = [X + 16*u + x for x in range(16)]
        o.append(valu(f"v_max_f32 v{m[u]}, v{regs[0]}, v{regs[1]}", [f"v{regs[0]}", f"v{regs[1]}"], [f"v{m[u]}"]))
        for x in range(2, 16, 2):
            o.append(valu(f"v_max3_f32 v{m[u]}, v{m[u]}, v{regs[x]}, v{regs[x+1]}", [f"v{m[u]}", f"v{regs[x]}", f"v{regs[x+1]}"], [f"v{m[u]}"]))
    for T in range(16):
        for r in range(4):
            v = f"v{Sx(T)+r}"
            o.append(valu(f"v_sub_f32 {v}, {v}, v{m[T//8]}", [v, f"v{m[T//8]}"], [v], exp={v: (("S", i, T, 3), r)}, prod={v: (("S", i, T, 3), r)}))
        for r in range(4): o.append(ex(i, T, r, S=Sx(T)))
        o.append(cv(i, T, 0, S=Sx(T))); o.append(cv(i, T, 1, S=Sx(T)))
        if T % 2: o.append(pw(i, (T % 8)//2, T//8))
    for u in range(2):
        for c in range(4): o.append(ones(i, u, c))
    o += [lw(i), wait_lgkm("all"), barrier(), lr(i, 0), lr(i, 1)]
    for u in range(2):
        for dt in range(2):
            for c in range(4): o.append(pv(i, 0, c, u, dt))
    for mm in range(6):
        for c in range(4): o.append(pr(i, mm, c))
        o.append(wait_lgkm("all"))
        for dt in range(2):
            for c in range(4): o.append(pv(i, mm//2 + 1, c, mm % 2, dt))
    for u in range(2):
        o += [ladd(i, u, 0), ladd(i, u, 1), ladd(i, u, 2), rcp(i, u), so_next(i, u)]
        for dt in range(2):
            for r in range(4): o.append(omul(i, u, dt, r))
            o += [ocv(i, u, dt, 0), ocv(i, u, dt, 1)]
        o.append(ost(i, u))
    a = salu(f"s_add_u32 s{sQoff}, s{sQoff}, 0x2000", [f"s{sQoff}"], [f"s{sQoff}", "scc"]); a.prod = {f"s{sQoff}": ("qoff", i+4)}
    o.append(a)
    return o
SL = 192
def slow_setup():
    o = []
    A = lambda t, rd=(), wr=(), prod=None: o.append(valu(t, rd, wr, prod=prod) if t.startswith("v_") else salu(t, rd, wr))
    W = f"s{sW}"
    o.append(wait_both("all", "all"))
    x = salu(f"s_mov_b32 s{sQoff}, 0", [], [f"s{sQoff}"]); x.prod = {f"s{sQoff}": ("qoff", 100)}; o.append(x)
    x = salu(f"s_lshl_b32 s{sM}, {W}, 11", [W], [f"s{sM}"]); x.prod = {f"s{sM}": ("sM", 0)}; o.append(x)
    A(f"v_mov_b32 v{vQrd}, v{vL16}", [f"v{vL16}"], [f"v{vQrd}"], prod={f"v{vQrd}": ("qrd", 0)})
    x = salu(f"s_mov_b32 s{sO0}, {(-0x2000) & 0xffffffff:#x}", [], [f"s{sO0}"]); x.prod = {f"s{sO0}": ("so", 99, 0)}; o.append(x)
    x = salu(f"s_mov_b32 s{sO1}, {(-0x1000) & 0xffffffff:#x}", [], [f"s{sO1}"]); x.prod = {f"s{sO1}": ("so", 99, 1)}; o.append(x)
    A(f"v_and_b32 v{vT[1]}, 15, v0", ["v0"], [f"v{vT[1]}"]); A(f"v_lshlrev_b32 v{vT[1]}, 7, v{vT[1]}", [f"v{vT[1]}"], [f"v{vT[1]}"])
    A(f"v_add_u32 v{vT[1]}, {MXB}, v{vT[1]}", [f"v{vT[1]}"], [f"v{vT[1]}"])
    A(f"v_lshrrev_b32 v{vT[0]}, 4, v0", ["v0"], [f"v{vT[0]}"]); A(f"s_lshl_b32 s{sT}, {W}, 2", [W])
    A(f"v_add_u32 v{vT[0]}, s{sT}, v{vT[0]}", [f"v{vT[0]}"], [f"v{vT[0]}"])
    A(f"v_lshl_add_u32 v{vT[0]}, v{vT[0]}, 2, v{vT[1]}", [f"v{vT[0]}", f"v{vT[1]}"], [f"v{vT[0]}"])
    A(f"s_mov_b32 s{sCnt}, {NB}")
    return o

def stamp(p):
    return [raw(f"s_memtime s[{40+2*p}:{41+2*p}]"), raw(f"s_memrealtime s[{70+2*p}:{71+2*p}]"), wait_lgkm("all")]
def dump(np_):
    o = [raw("s_load_dwordx2 s[4:5], s[0:1], 40"), raw("s_waitcnt lgkmcnt(0)"), raw("s_mov_b32 s6, 0x1000000"), raw("s_mov_b32 s7, 0x20000"),
         raw(f"s_lshl_b32 s3, s2, 2"), raw(f"s_add_u32 s3, s3, s{sW}"), raw("s_lshl_b32 s3, s3, 8"), raw("v_mov_b32 v1, 0"), raw("s_mov_b64 exec, 1")]
    for p in range(np_):
        for (b, off) in ((40, 0), (70, 128)):
            o += [raw(f"v_mov_b32 v2, s{b+2*p}"), raw(f"v_mov_b32 v3, s{b+1+2*p}"), raw(f"buffer_store_dwordx2 v[2:3], v1, s[4:7], s3 offen offset:{off+8*p}"), raw("s_nop 1")]
    o += [raw("s_waitcnt vmcnt(0)"), raw("s_endpgm")]
    return o
def dump_dbg(np_):
    o = [raw("s_load_dwordx2 s[4:5], s[0:1], 32"), raw("s_waitcnt lgkmcnt(0)"), raw("s_mov_b32 s6, 64"), raw("s_mov_b32 s7, 0x20000"),
         raw("s_mov_b32 s3, 64"), raw("s_cmp_eq_u32 s2, 7"), raw("s_cselect_b32 s3, 0, s3"), raw("s_cmp_eq_u32 s2, 133"), raw("s_cselect_b32 s3, 32, s3"),
         raw(f"s_cmp_eq_u32 s{sW}, 0"), raw("s_cselect_b32 s3, s3, 64"), raw("v_mov_b32 v1, 0"), raw("s_mov_b64 exec, 1")]
    for p in range(1, np_):
        o += [raw(f"s_sub_u32 s38, s{70+2*p}, s70"), raw("v_mov_b32 v2, s38"), raw(f"buffer_store_dword v2, v1, s[4:7], s3 offen offset:{4*(p-1)}"), raw("s_nop 1")]
    o += [raw("s_waitcnt vmcnt(0)"), raw("s_endpgm")]
    return o
def keyed(name, lst):
    for n, x in enumerate(lst): x.key = (name, n)
    return lst

def generate(path, force_slow=False, skip_fast=False, prof=False):
    pieces = {}
    trace = []
    def inst(name, lst):
        keyed(name, lst)
        if name in pieces:
            assert [x.text for x in pieces[name]] == [x.text for x in lst], name
        else: pieces[name] = lst
        trace.extend(lst)
    st = (lambda p: stamp(p)) if prof else (lambda p: [])
    inst("pro", st(0) + prologue(st) + st(3))
    if not skip_fast:
        inst("it0", iteration(0, PV=False, EP=False))
        inst("it1", iteration(1, EP=False) + st(4) + [salu(f"s_mov_b32 s{sCnt}, {(NB-2)//2 - 1}")])
        for i in range(2, NB - 2):
            body = iteration(i)
            if i & 1: body += [salu(f"s_sub_u32 s{sCnt}, s{sCnt}, 1"), salu(f"s_cmp_lg_u32 s{sCnt}, 0"), salu("s_cbranch_scc1 L_loop")]
            inst("odd" if i & 1 else "even", body)
        inst("it44", st(5) + iteration(NB-2, DMA=False))
        inst("it45", iteration(NB-1, DMA=False))
        inst("it46", st(6) + iteration(NB, QK=False, DMA=False))
        inst("it47", iteration(NB+1, QK=False, PV=False, DMA=False) + st(7) + ([wait_vm("all")] + st(8) + (dump(9) if prof == 1 else dump_dbg(9)) if prof else []))
        chkc = [valu(f"v_cmp_nge_f32 vcc, s{sT}, v{vMax}", [f"v{vMax}"], ["vcc"]),
                valu(f"v_cmp_nle_f32 s[38:39], s{sT2}, v{vMin}", [f"v{vMin}"], ["s38", "s39"]),
                nop(4), salu("s_or_b64 vcc, vcc, s[38:39]", ["vcc", "s38"]),
                salu("s_cbranch_scc0 L_end" if not force_slow else "s_nop 0")]
        inst("chk", [salu(f"s_mov_b32 s{sT}, {LHI:#x}"), salu(f"s_mov_b32 s{sT2}, {LLO:#x}")] + chkc)
    inst("slow0", slow_setup())
    for i in (100, 104, 108):
        b = slow_block(i)
        for x in b:
            for r, tg in list(x.exp.items()):
                if isinstance(tg, tuple) and tg[0] == "so" and x.text.startswith("s_add"): del x.exp[r]
                if isinstance(tg, tuple) and tg[0] == "qrd": del x.exp[r]
        b += [salu(f"s_sub_u32 s{sCnt}, s{sCnt}, 1"), salu(f"s_cmp_lg_u32 s{sCnt}, 0"), salu("s_cbranch_scc1 L_slow")]
        inst("slow", b)
    waits, nops, errs = resolve(trace, {"pro", "it0", "it46", "it47", "chk", "slow0", "slow"})
    if errs:
        for e in errs[:40]: print("ERR", e)
        raise SystemExit(f"{len(errs)} checker errors")
    ref = open("standalone__gqa_softmax__near_ridge.s.ref").read().split("\n")
    hdr = [l for l in ref if l.startswith(";") and "@launch" not in l]
    L = hdr + [f"; @launch grid=(256,1,1) block=(256,1,1) lds={LDS}", '.amdgcn_target "amdgcn-amd-amdhsa--gfx950"', ".text", f".globl {KN}", ".p2align 8",
         f".type {KN},@function", f"{KN}:", "    s_cmp_ge_u32 s2, 0x100", "    s_cbranch_scc1 L_end"]
    order = ["pro"] + ([] if skip_fast else ["it0", "it1", "even", "odd", "it44", "it45", "it46", "it47", "chk"]) + ["slow0", "slow"]
    for name in order:
        if name == "even": L += ["    .p2align 6" , "L_loop:"] if False else ["L_loop:"]
        if name == "slow": L.append("L_slow:")
        L.append(f"; ---- {name}")
        for x in pieces[name]: L += emit(x, waits, nops)
    L += ["L_end:", "    s_endpgm", '.section .rodata,"a"', ".p2align 6", f".amdhsa_kernel {KN}", "  .amdhsa_next_free_vgpr 512", "  .amdhsa_next_free_sgpr 102",
          "  .amdhsa_accum_offset 256", "  .amdhsa_group_segment_fixed_size 0", "  .amdhsa_kernarg_size 48", "  .amdhsa_user_sgpr_count 2",
          "  .amdhsa_user_sgpr_kernarg_segment_ptr 1", "  .amdhsa_system_sgpr_workgroup_id_x 1", ".end_amdhsa_kernel", ""]
    open(path, "w").write("\n".join(L))
    build(path)
    return nops

if __name__ == "__main__":
    print("VTOP", VTOP)
    generate("k_slow.s", skip_fast=True)
    n = generate("k1.s")
    generate("k1p.s", prof=1)
    generate("k1d.s", prof=2)
    print({k: v for k, v in n.items() if k[0] not in ("slow", "pro")})
```

```python
import sys, struct, math
from asmgen import *
from build import build
KN = "standalone__gqa_softmax__near_ridge_kernel"
NB = 46
QB = 0
PB = 32768
L2B = 69632
LOFF = 28672
MXB = 99328
VS = [98304, 131072]
LDS = 163840
NS = 8
sQ, sK, sV, sO = 8, 12, 16, 20
sM0 = 24; sKoff = 25; sVoff = 26; sVl = 27; sC2 = 4
sW = 28; sQoff = 29; sM = 30; sO0 = 31; sO1 = 32; sCnt = 33; sT = 34; sC = 35; sMask = 36; sT2 = 37
class Alloc:
    def __init__(s, start): s.p = start
    def get(s, n, al=4):
        s.p = (s.p + al - 1) // al * al; r = s.p; s.p += n; assert s.p <= 256, "out of vgprs"; return r
al = Alloc(1)
vL16 = al.get(1,1); vQrd = al.get(1,1); vPw = al.get(1,1); vPr = [al.get(1,1) for _ in range(3)]
vLw = al.get(1,1); vLr = al.get(1,1); vQd = al.get(1,1); vO = al.get(1,1); vMax = al.get(1,1); vMin = al.get(1,1)
vT = [al.get(1,1) for _ in range(4)]
vLs = [al.get(1,1) for _ in range(2)]; vRc = [al.get(1,1) for _ in range(2)]
vVd = al.get(1,1); vVt = al.get(1,1); vVa = al.get(1,1)
vOnes = al.get(4)
vQ = [[al.get(4) for j in range(4)] for u in range(2)]
vS = [al.get(4) for _ in range(4)]
vPo = {(c,u): al.get(4) for u in range(2) for c in range(4)}
vPoAlt = al.get(4)
vPs = [[al.get(4) for c in range(4)] for k in range(3)]
vOa = [[[al.get(4) for dt in range(2)] for u in range(2)] for par in range(2)]
vLa = [al.get(4) for u in range(2)]
vLd = [al.get(4) for u in range(2)]
vOut = [al.get(4) for u in range(2)]
VTOP = al.p
top = [al.get(4) for _ in range(10)]
_o = lambda l: [[l[0], l[1]], [l[2], l[3]]]
_po = [vPo[(c,u)] for u in range(2) for c in range(4)]
_ps = [vPs[k][c] for k in range(3) for c in range(4)]
O2 = [_o(_po[0:4]), _o(_po[4:8]), _o(_ps[0:4]), _o(_ps[4:8]), _o(_ps[8:12]), _o(top[0:4]), vOa[0], vOa[1]]
vP2 = top[4:6]
vP3 = [vOut, top[6:8], top[8:10]]
assert vLd[1] == vLd[0] + 4
def aK(t, j): return 16*t + 4*j
def aV(k, c, dt): return 128 + 32*k + 8*c + 4*dt
def Po(c, u, i): return vPoAlt if (c, u) == (0, 0) and (i & 1) else vPo[(c, u)]
def f32(x): return struct.unpack("<I", struct.pack("<f", x))[0]
CSC = f32(math.log2(math.e) / math.sqrt(128.0))
LHI = f32(2.0**40); LLO = f32(2.0**-40)

def qk(i, T, j, S=None):
    u, t = T // 8, T % 8
    S = vS[T % 4] if S is None else S
    return mfma(S, ("a", aK(t, j)), vQ[u][j], c=(j > 0), ta=("K", t, j), tb=("Q", i, u, j),
                tc=("S", i, T, j-1), td=("S", i, T, j))
def ex(i, T, r, S=None):
    S = vS[T % 4] if S is None else S
    v = f"v{S+r}"
    return valu(f"v_exp_f32 {v}, {v}", [v], [v], exp={v: (("S", i, T, 3), r)}, prod={v: (("E", i, T), r)}, trans=True)
def cv(i, T, h, S=None):
    S = vS[T % 4] if S is None else S
    u, c, half = T // 8, (T % 8) // 2, T % 2
    d = Po(c, u, i) + 2*half + h
    a, b = f"v{S+2*h}", f"v{S+2*h+1}"
    return valu(f"v_cvt_pk_bf16_f32 v{d}, {a}, {b}", [a, b], [f"v{d}"],
                exp={a: (("E", i, T), 2*h), b: (("E", i, T), 2*h+1)}, prod={f"v{d}": (("P", i, 0, c, u), 2*half+h)})
def pw(i, c, u):
    d = Po(c, u, i); buf = i & 1
    return I("dsw", f"ds_write_b128 v{vPw}, {rng('v', d, 4)} offset:{buf*32768 + (u*4+c)*1024}",
             rd=[f"v{vPw}"] + R("v", d, 4), exp=tagmap(R("v", d, 4), ("P", i, 0, c, u)),
             ldsw=[(("P", buf, c, u), ("P", i))])
def pr(i, m, c):
    k, u = m // 2, m % 2; buf = i & 1; d = vPs[m % 3][c]
    return I("dsr", f"ds_read_b128 {rng('v', d, 4)}, v{vPr[k]} offset:{buf*32768 + (u*4+c)*1024}",
             rd=[f"v{vPr[k]}"], wr=R("v", d, 4), prod=tagmap(R("v", d, 4), ("P", i, k+1, c, u)),
             ldsr=[(("P", buf, c, u), ("P", i))])
def qr(i, u, j):
    d = vQ[u][j]
    return I("dsr", f"ds_read_b128 {rng('v', d, 4)}, v{vQrd} offset:{(i & 1)*8192 + (u*4+j)*1024}",
             rd=[f"v{vQrd}"], wr=R("v", d, 4), exp={f"v{vQrd}": ("qrd", (i >> 1) & 1)},
             prod=tagmap(R("v", d, 4), ("Q", i, u, j)), ldsr=[(("Q", i & 3, (u*4+j) & 1), ("Q", i))])
def pv(i, k, c, u, dt):
    d = vOa[i & 1][u][dt]
    b = Po(c, u, i) if k == 0 else vPs[((k-1)*2 + u) % 3][c]
    n = k*4 + c
    return mfma(d, ("a", aV(k, c, dt)), b, c=(n > 0), ta=("V", k, c, dt), tb=("P", i, k, c, u),
                tc=("O", i, u, dt, n-1), td=("O", i, u, dt, n))
def ones(i, u, c):
    return mfma(vLa[u], ("v", vOnes), Po(c, u, i), c=(c > 0), ta="ones", tb=("P", i, 0, c, u),
                tc=("L", i, u, c-1), td=("L", i, u, c))
def lw(i):
    buf = i & 1
    return I("dsw", f"ds_write2st64_b32 v{vLw}, v{vLa[0]}, v{vLa[1]} offset0:{LOFF//256+buf*2} offset1:{LOFF//256+buf*2+1}",
             rd=[f"v{vLw}", f"v{vLa[0]}", f"v{vLa[1]}"],
             exp={f"v{vLa[0]}": (("L", i, 0, 3), 0), f"v{vLa[1]}": (("L", i, 1, 3), 0)}, ldsw=[(("L", buf), ("L", i))])
def lr(i, u):
    buf = i & 1; d = vLd[u]
    return I("dsr", f"ds_read_b128 {rng('v', d, 4)}, v{vLr} offset:{LOFF + buf*512 + u*256}", rd=[f"v{vLr}"], wr=R("v", d, 4),
             prod=tagmap(R("v", d, 4), ("LP", i, u)), ldsr=[(("L", buf), ("L", i))])
def ladd(i, u, s):
    d = vLd[u]
    if s == 0: return valu(f"v_add_f32 v{d}, v{d}, v{d+1}", R("v", d, 2), [f"v{d}"], exp={f"v{d}": (("LP", i, u), 0), f"v{d+1}": (("LP", i, u), 1)}, prod={f"v{d}": ("LA", i, u)})
    if s == 1: return valu(f"v_add_f32 v{d+2}, v{d+2}, v{d+3}", R("v", d+2, 2), [f"v{d+2}"], exp={f"v{d+2}": (("LP", i, u), 2), f"v{d+3}": (("LP", i, u), 3)}, prod={f"v{d+2}": ("LB", i, u)})
    return valu(f"v_add_f32 v{vLs[u]}, v{d}, v{d+2}", [f"v{d}", f"v{d+2}"], [f"v{vLs[u]}"], exp={f"v{d}": ("LA", i, u), f"v{d+2}": ("LB", i, u)}, prod={f"v{vLs[u]}": ("LS", i, u)})
def rcp(i, u):
    return valu(f"v_rcp_f32 v{vRc[u]}, v{vLs[u]}", [f"v{vLs[u]}"], [f"v{vRc[u]}"], exp={f"v{vLs[u]}": ("LS", i, u)}, prod={f"v{vRc[u]}": ("RC", i, u)}, trans=True)
def chk(i, mx):
    v = vMax if mx else vMin
    return valu(f"v_{'max' if mx else 'min'}3_f32 v{v}, v{v}, v{vLs[0]}, v{vLs[1]}", [f"v{v}", f"v{vLs[0]}", f"v{vLs[1]}"], [f"v{v}"],
                exp={f"v{vLs[0]}": ("LS", i, 0), f"v{vLs[1]}": ("LS", i, 1)})
def omul(i, u, dt, r):
    v = f"v{vOa[i & 1][u][dt] + r}"
    return valu(f"v_mul_f32 {v}, {v}, v{vRc[u]}", [v, f"v{vRc[u]}"], [v], exp={v: (("O", i, u, dt, 15), r), f"v{vRc[u]}": ("RC", i, u)}, prod={v: (("N", i, u, dt), r)})
def ocv(i, u, dt, h):
    s = vOa[i & 1][u][dt] + 2*h; d = vOut[u] + 2*dt + h
    return valu(f"v_cvt_pk_bf16_f32 v{d}, v{s}, v{s+1}", R("v", s, 2), [f"v{d}"],
                exp={f"v{s}": (("N", i, u, dt), 2*h), f"v{s+1}": (("N", i, u, dt), 2*h+1)}, prod={f"v{d}": (("OUT", i, u), 2*dt+h)})
STFLAG = " nt"
KFLAG = " nt"
VFLAG = " nt"
def ost(i, u):
    so = sO0 if u == 0 else sO1
    return I("vmem", f"buffer_store_dwordx4 {rng('v', vOut[u], 4)}, v{vO}, s[{sO}:{sO+3}], s{so} offen{STFLAG}",
             rd=R("v", vOut[u], 4) + [f"v{vO}", f"s{so}"], exp={**tagmap(R("v", vOut[u], 4), ("OUT", i, u)), f"s{so}": ("so", i, u)})
def so_next(i, u):
    so = sO0 if u == 0 else sO1
    x = salu(f"s_add_u32 s{so}, s{so}, 0x2000", [f"s{so}"], [f"s{so}", "scc"]); x.exp = {f"s{so}": ("so", i-1, u)}; x.prod = {f"s{so}": ("so", i, u)}; return x
QFLAG = " nt"
def m0set(i, h):
    x = salu(f"s_mov_b32 m0, s{sM}" if h == 0 else f"s_add_u32 m0, s{sM}, {1024-64}", [f"s{sM}"], ["m0"] + (["scc"] if h else []))
    x.exp = {f"s{sM}": ("sM", i & 3)}; x.prod = {"m0": ("m0", i & 3, h)}; return x
def qdma(i, h):
    return I("vmem", f"buffer_load_dwordx4 v{vQd}, s[{sQ}:{sQ+3}], s{sQoff} offen{' offset:64' if h else ''}{QFLAG} lds",
             rd=[f"v{vQd}", f"s{sQoff}", "m0"], exp={"m0": ("m0", i & 3, h), f"s{sQoff}": ("qoff", i)}, ldsw=[(("Q", i & 3, h), ("Q", i))])
def q_next(i):
    a = salu(f"s_add_u32 s{sQoff}, s{sQoff}, 0x2000", [f"s{sQoff}"], [f"s{sQoff}", "scc"]); a.exp = {f"s{sQoff}": ("qoff", i-1)}; a.prod = {f"s{sQoff}": ("qoff", i)}
    b = salu(f"s_add_u32 s{sM}, s{sM}, 0x2000", [f"s{sM}"], [f"s{sM}", "scc"]); b.exp = {f"s{sM}": ("sM", (i-1) & 3)}; b.prod = {f"s{sM}": ("sM'", i & 3)}
    c = salu(f"s_and_b32 s{sM}, s{sM}, 0x7fff", [f"s{sM}"], [f"s{sM}", "scc"]); c.exp = {f"s{sM}": ("sM'", i & 3)}; c.prod = {f"s{sM}": ("sM", i & 3)}
    return [a, b, c]
def qtoggle(i):
    v = f"v{vQrd}"
    return valu(f"v_xor_b32 {v}, 0x4000, {v}", [v], [v], exp={v: ("qrd", ((i >> 1) & 1) ^ 1)}, prod={v: ("qrd", (i >> 1) & 1)})

def iteration(i, QK=True, PV=True, EP=True, DMA=True):
    M = []
    pvseq = [(k, u, dt) for k in range(4) for u in range(2) for dt in range(2)]
    for T in range(16):
        M += [qk(i, T, j) if QK else None for j in range(4)]
        if T == 0: M += [ones(i-1, 1, c) if PV else None for c in range(4)]
        if T == 8: M += [ones(i, 0, c) if QK else None for c in range(4)]
        k, u, dt = pvseq[T]
        M += [pv(i-1, k, c, u, dt) if PV else None for c in range(4)]
    assert len(M) == 136
    G = [[] for _ in range(136)]
    def put(g, *ins):
        for x in ins:
            if x is not None: G[g].append(x)
    Rr = [6, 18, 26, 34, 42, 50, 58, 66, 74, 86, 94, 102, 110, 118, 126, 134]
    cg = {T: (Rr[T]+4, Rr[T]+5) for T in range(16)}
    cg[0] = (11, 12)
    rd = {}
    if QK:
        for j, g in enumerate((2, 3, 11, 12)): rd[g] = qr(i, 1, j)
    if QK and i + 1 < NB:
        for j, g in enumerate((114, 115, 122, 123)): rd[g] = qr(i+1, 0, j)
    if PV:
        slots = [17, 22, 23, 25, 30, 31, 38, 39, 46, 47, 54, 55, 62, 63, 70, 71, 78, 79, 90, 91, 98, 99, 106, 107]
        for n, g in enumerate(slots): rd[g] = pr(i-1, n // 4, n % 4)
        rd[130] = lr(i-1, 0); rd[131] = lr(i-1, 1)
    if PV:
        put(15, wait_both("all", [("w", ("Q", (i+1) & 3, 0)), ("w", ("Q", (i+1) & 3, 1))] if (QK and i+1 < NB) else None))
        put(16, barrier())
        for m, g in enumerate((37, 53, 75, 89, 105, 121)): put(g, wait_lgkm(sum((R("v", vPs[m % 3][c], 4) for c in range(4)), [])))
    elif QK:
        put(15, wait_both("all", [("w", ("Q", (i+1) & 3, 0)), ("w", ("Q", (i+1) & 3, 1))]))
        put(16, barrier())
    if QK:
        put(66, wait_lgkm(sum((R("v", vQ[1][j], 4) for j in range(4)), [])))
        if i + 1 < NB: put(135, wait_lgkm(sum((R("v", vQ[0][j], 4) for j in range(4)), [])))
    if EP:
        put(1, wait_lgkm(R("v", vLd[0], 4) + R("v", vLd[1], 4)))
        put(18, so_next(i-2, 0)); put(19, so_next(i-2, 1))
    if DMA:
        a, b, c = q_next(i+4)
        put(26, a); put(27, b); put(28, c); put(29, m0set(i+4, 0))
        put(32, qdma(i+4, 0)); put(34, m0set(i+4, 1)); put(41, qdma(i+4, 1))
    for g, x in rd.items(): put(g, x)
    if PV:
        put(0, ex(i-1, 15, 2)); put(1, ex(i-1, 15, 3)); put(2, cv(i-1, 15, 0)); put(3, cv(i-1, 15, 1)); put(4, pw(i-1, 3, 1))
        put(10, lw(i-1))
    if QK:
        for T in range(16):
            for r in range(4):
                if Rr[T] + r < 136: put(Rr[T]+r, ex(i, T, r))
            if T < 15:
                put(cg[T][0], cv(i, T, 0)); put(cg[T][1], cv(i, T, 1))
                if T % 2: put(cg[T][1]+1, pw(i, (T % 8)//2, T//8))
    if EP:
        e = i - 2
        put(5, ladd(e, 0, 0), ladd(e, 0, 1)); put(13, ladd(e, 1, 0), ladd(e, 1, 1)); put(14, ladd(e, 0, 2), ladd(e, 1, 2))
        put(15, rcp(e, 0)); put(16, rcp(e, 1)); put(17, chk(e, True)); put(25, chk(e, False))
        put(33, omul(e,0,0,0), omul(e,0,0,1)); put(48, omul(e,0,0,2), omul(e,0,0,3)); put(49, omul(e,0,1,0), omul(e,0,1,1))
        put(57, omul(e,0,1,2), omul(e,0,1,3)); put(64, ocv(e,0,0,0), ocv(e,0,0,1)); put(65, ocv(e,0,1,0), ocv(e,0,1,1))
        put(73, ost(e, 0))
        put(80, omul(e,1,0,0), omul(e,1,0,1)); put(81, omul(e,1,0,2), omul(e,1,0,3)); put(82, omul(e,1,1,0), omul(e,1,1,1))
        put(83, omul(e,1,1,2), omul(e,1,1,3)); put(84, ocv(e,1,0,0), ocv(e,1,0,1)); put(85, ocv(e,1,1,0), ocv(e,1,1,1))
        put(93, ost(e, 1))
    if QK and (i & 1) and i + 1 < NB: put(100, qtoggle(i+1))
    out = []
    for n in range(136):
        if M[n] is not None: out.append(M[n])
        out += G[n]
    return out

def setup():
    o = []
    A = lambda t, rd=(), wr=(), prod=None: o.append(valu(t, rd, wr, prod=prod) if t.startswith("v_") else salu(t, rd, wr))
    A("s_load_dwordx4 s[4:7], s[0:1], 0"); A("s_load_dwordx4 s[24:27], s[0:1], 16")
    A(f"v_lshrrev_b32 v{vT[0]}, 6, v0", ["v0"], [f"v{vT[0]}"])
    A(f"v_and_b32 v0, 63, v0", ["v0"], ["v0"])
    A(f"v_readfirstlane_b32 s{sW}, v{vT[0]}", [f"v{vT[0]}"], [f"s{sW}"])
    A(f"v_lshlrev_b32 v{vL16}, 4, v0", ["v0"], [f"v{vL16}"])
    A(f"v_and_b32 v{vT[1]}, 15, v0", ["v0"], [f"v{vT[1]}"])
    A(f"v_lshrrev_b32 v{vT[2]}, 4, v0", ["v0"], [f"v{vT[2]}"])
    A(f"s_mul_i32 s{sT}, s2, 0x5c000"); A(f"s_lshl_b32 s{sT2}, s2, 17")
    A(f"s_mov_b32 s{sQ+2}, 0x5c000"); A(f"s_mov_b32 s{sQ+3}, 0x20000"); A(f"s_mov_b32 s{sK+2}, 0x20000"); A(f"s_mov_b32 s{sK+3}, 0x20000")
    A(f"s_mov_b32 s{sV+2}, 0x20000"); A(f"s_mov_b32 s{sV+3}, 0x20000"); A(f"s_mov_b32 s{sO+2}, 0x5c000"); A(f"s_mov_b32 s{sO+3}, 0x20000")
    o.append(raw("s_waitcnt lgkmcnt(0)"))
    A(f"s_add_u32 s{sK}, s6, s{sT2}"); A(f"s_addc_u32 s{sK+1}, s7, 0")
    A(f"s_add_u32 s{sQ}, s4, s{sT}"); A(f"s_addc_u32 s{sQ+1}, s5, 0")
    A(f"s_add_u32 s{sV}, s24, s{sT2}"); A(f"s_addc_u32 s{sV+1}, s25, 0")
    A(f"s_add_u32 s{sO}, s26, s{sT}"); A(f"s_addc_u32 s{sO+1}, s27, 0")
    return o
class Cfg:
    D = 12
    LAT = 1.35
    DT = 0.137
    F = 2.0e3
    EARLY = 0.0
    KM = 0.0
    units = [(b, c) for c in range(4) for b in range(NS)]
    loads = "Q0 K0 Q1 V0 Q2 Q3 Q4 Q5 Q6 Q7 K1 V1 K2 V2 K3 V3 Q8 Q9 Q10 Q11"
def S_(t, rd=(), wr=(), exp=None, prod=None):
    x = salu(t, rd, wr); x.exp = exp or {}; x.prod = prod or {}; return x
def qk2(b, c, x, j):
    u, t = x // 2, 2*c + x % 2
    return mfma(vS[x], ("a", aK(t, j)), vQ[u][j], c=(j > 0), ta=("K", t, j), tb=("Q", b, u, j), tc=("S", (b, c), x, j-1), td=("S", (b, c), x, j))
def ex2(b, c, x, r): return ex((b, c), x, r, S=vS[x])
def cv2(b, c, x, h):
    S = vS[x]; u = x // 2; d = vP2[u] + 2*(x % 2) + h
    a, e = f"v{S+2*h}", f"v{S+2*h+1}"
    return valu(f"v_cvt_pk_bf16_f32 v{d}, {a}, {e}", [a, e], [f"v{d}"],
                exp={a: (("E", (b, c), x), 2*h), e: (("E", (b, c), x), 2*h+1)}, prod={f"v{d}": (("P2", b, c, 0, u), 2*(x % 2)+h)})
def pw2(n, b, c, u):
    d = vP2[u]
    return I("dsw", f"ds_write_b128 v{vPw}, {rng('v', d, 4)} offset:{32768 + ((n & 1)*2+u)*1024}", rd=[f"v{vPw}"] + R("v", d, 4),
             exp=tagmap(R("v", d, 4), ("P2", b, c, 0, u)), ldsw=[(("X", n & 1, u), ("X", n))])
def pr2(n, b, c, k, u):
    d = vP3[k-1][u]
    return I("dsr", f"ds_read_b128 {rng('v', d, 4)}, v{vPr[k-1]} offset:{32768 + ((n & 1)*2+u)*1024}", rd=[f"v{vPr[k-1]}"], wr=R("v", d, 4),
             prod=tagmap(R("v", d, 4), ("P2", b, c, k, u)), ldsr=[(("X", n & 1, u), ("X", n))])
def qr2(b, u, j):
    d = vQ[u][j]; sl = b if b < NS else b & 3
    return I("dsr", f"ds_read_b128 {rng('v', d, 4)}, v{vQrd} offset:{sl*8192 + (u*4+j)*1024}", rd=[f"v{vQrd}"], wr=R("v", d, 4),
             exp={f"v{vQrd}": ("qrd", 0)}, prod=tagmap(R("v", d, 4), ("Q", b, u, j)), ldsr=[(("Q", sl, (u*4+j) & 1), ("Q", b))])
def pv2(b, c, m, k, u, dt):
    n = 4*m + k
    return mfma(O2[b][u][dt], ("a", aV(k, c, dt)), vP2[u] if k == 0 else vP3[k-1][u], c=(n > 0), ta=("V", k, c, dt), tb=("P2", b, c, k, u),
                tc=("O", b, u, dt, n-1), td=("O", b, u, dt, n))
def ones2(b, c, m, u):
    x = mfma(vLa[u], ("v", vOnes), vP2[u], c=(m > 0), ta="ones", tb=("P2", b, c, 0, u), td=("L2", b, m, u))
    if m: x.exp[f"v{vLa[u]}"] = (("L2", b, m-1, u), 0)
    return x
def lacc2(b, m):
    return I("dsw", f"ds_write2st64_b32 v{vLw}, v{vLa[0]}, v{vLa[1]} offset0:{2*b} offset1:{2*b+1}", rd=[f"v{vLw}", f"v{vLa[0]}", f"v{vLa[1]}"],
             exp={f"v{vLa[u]}": (("L2", b, m, u), 0) for u in range(2)}, ldsw=[(("L2", b, u), ("L2", b, m)) for u in range(2)])
def lrd2(b, m, u):
    return I("dsr", f"ds_read_b32 v{vLa[u]}, v{vLw} offset:{b*512 + u*256}", rd=[f"v{vLw}"], wr=[f"v{vLa[u]}"],
             prod={f"v{vLa[u]}": (("L2", b, m, u), 0)}, ldsr=[(("L2", b, u), ("L2", b, m))])
def lr2(b, u):
    d = vLd[u]
    return I("dsr", f"ds_read_b128 {rng('v', d, 4)}, v{vLr} offset:{b*512 + u*256}", rd=[f"v{vLr}"], wr=R("v", d, 4),
             prod=tagmap(R("v", d, 4), ("LP", b, u)), ldsr=[(("L2", b, u), ("L2", b, 3))])
def ep2(b):
    o = [wait_lgkm(R("v", vLd[0], 8)), ladd(b,0,0), ladd(b,0,1), ladd(b,1,0), ladd(b,1,1), ladd(b,0,2), ladd(b,1,2), rcp(b,0), rcp(b,1),
         so_next(b, 0), so_next(b, 1), chk(b, True), chk(b, False)]
    for u in range(2):
        for dt in range(2):
            for r in range(4):
                v = f"v{O2[b][u][dt] + r}"
                o.append(valu(f"v_mul_f32 {v}, {v}, v{vRc[u]}", [v, f"v{vRc[u]}"], [v], exp={v: (("O", b, u, dt, 15), r), f"v{vRc[u]}": ("RC", b, u)}, prod={v: (("N", b, u, dt), r)}))
        D = O2[b][u][0]
        for dt in range(2):
            for h in range(2):
                s = O2[b][u][dt] + 2*h; d = D + 2*dt + h
                o.append(valu(f"v_cvt_pk_bf16_f32 v{d}, v{s}, v{s+1}", R("v", s, 2), [f"v{d}"],
                              exp={f"v{s}": (("N", b, u, dt), 2*h), f"v{s+1}": (("N", b, u, dt), 2*h+1)}, prod={f"v{d}": (("OUT", b, u), 2*dt+h)}))
        so = sO0 if u == 0 else sO1
        o.append(I("vmem", f"buffer_store_dwordx4 {rng('v', D, 4)}, v{vO}, s[{sO}:{sO+3}], s{so} offen{STFLAG}",
                   rd=R("v", D, 4) + [f"v{vO}", f"s{so}"], exp={**tagmap(R("v", D, 4), ("OUT", b, u)), f"s{so}": ("so", b, u)}))
    return o
def prescale(t, j, pk):
    tmp = vLd[0]; o = []; regs = R("a", aK(t, j), 4); V = lambda r: f"v{tmp+r}"
    for r in range(4): o.append(valu(f"v_accvgpr_read_b32 {V(2*r+1)}, {regs[r]}", [regs[r]], [V(2*r+1)], exp={regs[r]: (("Kraw", t, j), r)}))
    for r in range(4): o.append(valu(f"v_lshlrev_b32 {V(2*r)}, 16, {V(2*r+1)}", [V(2*r+1)], [V(2*r)]))
    for r in range(4): o.append(valu(f"v_and_b32 {V(2*r+1)}, s{sMask}, {V(2*r+1)}", [V(2*r+1)], [V(2*r+1)]))
    if pk:
        for r in range(4): o.append(valu(f"v_pk_mul_f32 {rng('v', tmp+2*r, 2)}, {rng('v', tmp+2*r, 2)}, s[{sC2}:{sC2+1}]", [V(2*r), V(2*r+1)], [V(2*r), V(2*r+1)]))
    else:
        for r in range(8): o.append(valu(f"v_mul_f32 {V(r)}, s{sC2}, {V(r)}", [V(r)], [V(r)]))
    for r in range(4): o.append(valu(f"v_cvt_pk_bf16_f32 {V(2*r)}, {V(2*r)}, {V(2*r+1)}", [V(2*r), V(2*r+1)], [V(2*r)]))
    for r in range(4): o.append(valu(f"v_accvgpr_write_b32 {regs[r]}, {V(2*r)}", [V(2*r)], [regs[r]], prod={regs[r]: (("K", t, j), r)}))
    return o
def vtr(c, k):
    o = [S_(f"s_add_u32 s{sT}, s{sVl}, {k*8192}", [f"s{sVl}"], [f"s{sT}"]), S_(f"s_and_b32 s{sT}, s{sT}, 0x7fff", [f"s{sT}"], [f"s{sT}"]),
         S_(f"s_add_u32 s{sT}, s{sT}, {VS[c & 1]}", [f"s{sT}"], [f"s{sT}"]),
         valu(f"v_add_u32 v{vVa}, s{sT}, v{vVt}", [f"v{vVt}", f"s{sT}"], [f"v{vVa}"], prod={f"v{vVa}": ("va", c, k)})]
    rds = []
    for dt in range(2):
        for h in range(2):
            d = aV(k, c, dt) + 2*h
            rds.append(I("dsr", f"ds_read_b64_tr_b16 a[{d}:{d+1}], v{vVa} offset:{h*4096 + 8*dt}", rd=[f"v{vVa}"], wr=R("a", d, 2), exp={f"v{vVa}": ("va", c, k)},
                         prod={f"a{d}": (("V", k, c, dt), 2*h), f"a{d+1}": (("V", k, c, dt), 2*h+1)}, ldsr=[(("V", c & 1, n), ("V", c)) for n in range(8)]))
    return o, rds

COST = {"valu": 4, "trans": 8, "dsr": 4, "dsw": 10, "vmem": 8, "salu": 2, "wait": 1, "bar": 8, "nop": 2, "raw": 2, "label": 0}
class Start:
    def __init__(s, cfg):
        s.c = cfg; s.o = []; s.t = 0.0; s.tm = -1e9
        s.L = []
        for w in cfg.loads.split():
            w, _, sub = w.partition(".")
            n = int(w[1:])
            if w[0] == "Q": g = [("Q", n, h) for h in range(2)]
            if w[0] == "K": g = [("K", 2*n + x // 4, x % 4) for x in range(8)]
            if w[0] == "V": g = [("V", n, x) for x in range(8)]
            if sub:
                a, _, b = sub.partition("-"); g = g[int(a):int(b or a)+1]
            s.L += g
        s.idx = {l: i for i, l in enumerate(s.L)}
        s.ni = 0; s.C = []; s.m0 = None; s.ok = set(["Q%d" % b for b in range(NS)] + ["V0", "V1"])
        s.log = []
    def add(s, *ins):
        for x in ins:
            s.o.append(x)
            if x.kind == "mfma":
                s.t = max(s.t + 4, s.tm + 16); s.tm = s.t; s.t += 4
            else: s.t += COST[x.kind]
    def us(s): return s.t / s.c.F
    def allowed(s):
        if s.ni >= len(s.L): return False
        l = s.L[s.ni]
        return l[0] == "K" or f"{l[0]}{l[1]}" in s.ok
    def free_at(s): return s.C[s.ni - s.c.D] if s.ni >= s.c.D else 0.0
    def issue(s):
        l = s.L[s.ni]; o = []
        if l[0] == "Q":
            _, b, h = l; sl = b if b < NS else b & 3
            o.append(S_(f"s_add_u32 m0, s{sM0}, {sl*8192 + 960*h}", [f"s{sM0}"], ["m0"], prod={"m0": ("m0q", b, h)}))
            o.append(S_(f"s_add_u32 s{sQoff}, s{sQoff}, 0x2000", [f"s{sQoff}"], [f"s{sQoff}"], exp={f"s{sQoff}": ("qoff", b-1)}, prod={f"s{sQoff}": ("qoff", b)}) if (h == 0 and b > 0) else nop(0))
            o.append(I("vmem", f"buffer_load_dwordx4 v{vQd}, s[{sQ}:{sQ+3}], s{sQoff} offen{' offset:64' if h else ''}{QFLAG} lds",
                       rd=[f"v{vQd}", f"s{sQoff}", "m0"], exp={"m0": ("m0q", b, h), f"s{sQoff}": ("qoff", b)}, ldsw=[(("Q", sl, h), ("Q", b))]))
            s.m0 = None
        elif l[0] == "K":
            _, t, j = l
            if j == 0 and t > 0: o.append(S_(f"s_add_u32 s{sKoff}, s{sKoff}, 0x1000", [f"s{sKoff}"], [f"s{sKoff}"], exp={f"s{sKoff}": ("koff", t-1)}, prod={f"s{sKoff}": ("koff", t)}))
            o.append(I("vmem", f"buffer_load_dwordx4 {rng('a', aK(t, j), 4)}, v{vO}, s[{sK}:{sK+3}], s{sKoff} offen offset:{64*j}{KFLAG}",
                       rd=[f"v{vO}", f"s{sKoff}"], wr=R("a", aK(t, j), 4), exp={f"s{sKoff}": ("koff", t)}, prod=tagmap(R("a", aK(t, j), 4), ("Kraw", t, j))))
        else:
            _, c, n = l; grp = 2*c + n // 4
            if s.m0 != grp:
                o.append(S_(f"s_add_u32 m0, s{sVl}, {VS[c & 1] + (n // 4)*4096}", [f"s{sVl}"], ["m0"], prod={"m0": ("m0v", grp)})); s.m0 = grp
                o.append(S_(f"s_add_u32 s{sVoff}, s{sVoff}, 0x1000", [f"s{sVoff}"], [f"s{sVoff}"], exp={f"s{sVoff}": ("voff", grp-1)}, prod={f"s{sVoff}": ("voff", grp)}) if (n % 4 == 0 and grp > 0) else nop(0))
            o.append(I("vmem", f"buffer_load_dwordx4 v{vVd}, s[{sV}:{sV+3}], s{sVoff} offen offset:{1024*(n % 4)}{VFLAG} lds",
                       rd=[f"v{vVd}", f"s{sVoff}", "m0"], exp={"m0": ("m0v", grp), f"s{sVoff}": ("voff", grp)}, ldsw=[(("V", c & 1, n), ("V", c))]))
        s.t = max(s.t, s.free_at() * s.c.F)
        s.add(*o)
        s.C.append(max(s.us() + s.c.LAT, (s.C[-1] if s.C else 0) + s.c.DT))
        s.log.append((s.ni, l, round(s.us(), 2), round(s.C[-1], 2)))
        s.ni += 1
    def maybe_issue(s):
        if s.allowed() and s.free_at() <= s.us() + s.c.EARLY: s.issue()
    def topup(s, x):
        while s.allowed() and s.ni <= x + s.c.D: s.issue()
        assert s.ni > x, (x, s.L[x])
    def need(s, loads):
        if not loads: return None
        x = max(s.idx[l] for l in loads); s.topup(x)
        tg = []
        for l in loads:
            if l[0] == "Q": tg.append(("w", ("Q", l[1] if l[1] < NS else l[1] & 3, l[2])))
            elif l[0] == "V": tg.append(("w", ("V", l[1] & 1, l[2])))
            else: tg += R("a", aK(l[1], l[2]), 4)
        s.t = max(s.t, s.C[x] * s.c.F)
        return tg

def slots(x): return {"valu": 1, "trans": 2}.get(x.kind, 0)
def prologue(s, st):
    A = lambda t, rd=(), wr=(), prod=None: s.add(valu(t, rd, wr, prod=prod) if t.startswith("v_") else S_(t, rd, wr, prod=prod))
    s.add(*setup()); s.t += 0.3 * s.c.F
    q, g = f"v{vT[1]}", f"v{vT[2]}"
    t0, t3 = f"v{vT[0]}", f"v{vT[3]}"
    W = f"s{sW}"
    A(f"v_lshlrev_b32 {t0}, 8, {q}", [q], [t0])
    A(f"v_lshl_add_u32 {t0}, {g}, 4, {t0}", [g, t0], [t0])
    A(f"s_lshr_b32 s{sT}, {W}, 1", [W]); A(f"s_lshl_b32 s{sT}, s{sT}, 12"); A(f"s_and_b32 s{sT2}, {W}, 1", [W]); A(f"s_lshl_b32 s{sT2}, s{sT2}, 7")
    A(f"s_add_u32 s{sT}, s{sT}, s{sT2}")
    A(f"v_add_u32 v{vQd}, s{sT}, {t0}", [t0], [f"v{vQd}"])
    A(f"s_lshl_b32 s{sT}, {W}, 6", [W])
    A(f"v_add_u32 v{vO}, s{sT}, {t0}", [t0], [f"v{vO}"])
    A(f"s_lshl_b32 s{sVoff}, {W}, 15", [W], [f"s{sVoff}"], prod={f"s{sVoff}": ("voff", 0)})
    A(f"s_sub_u32 s{sKoff}, s{sVoff}, s{sT}", [], [f"s{sKoff}"], prod={f"s{sKoff}": ("koff", 0)})
    A(f"s_mov_b32 s{sQoff}, 0", [], [f"s{sQoff}"], prod={f"s{sQoff}": ("qoff", 0)})
    A(f"s_lshl_b32 s{sM0}, {W}, 11", [W], [f"s{sM0}"]); A(f"s_lshl_b32 s{sVl}, {W}, 13", [W], [f"s{sVl}"])
    while s.L[s.ni][0] != "V" and s.ni < s.c.D: s.issue()
    vd = f"v{vVd}"
    A(f"v_lshlrev_b32 {vd}, 2, {g}", [g], [vd]); A(f"v_xor_b32 {vd}, {q}, {vd}", [q, vd], [vd]); A(f"v_lshlrev_b32 {vd}, 4, {vd}", [vd], [vd])
    A(f"v_lshl_add_u32 {vd}, {g}, 8, {vd}", [g, vd], [vd])
    while s.ni < s.c.D: s.issue()
    A(f"v_mov_b32 v{vQrd}, v{vL16}", [f"v{vL16}"], [f"v{vQrd}"], prod={f"v{vQrd}": ("qrd", 0)})
    A(f"s_add_u32 s{sT2}, s{sVl}, {PB}")
    A(f"v_add_u32 v{vPw}, s{sT2}, v{vL16}", [f"v{vL16}"], [f"v{vPw}"])
    for k in range(3):
        A(f"s_add_u32 s{sT}, s{sVl}, {(k+1)*8192}"); A(f"s_and_b32 s{sT}, s{sT}, 0x7fff"); A(f"s_add_u32 s{sT2}, s{sT}, {PB}")
        A(f"v_add_u32 v{vPr[k]}, s{sT2}, v{vL16}", [f"v{vL16}"], [f"v{vPr[k]}"])
    lr_, lw_ = f"v{vLr}", f"v{vLw}"
    A(f"v_lshlrev_b32 {lr_}, 13, {g}", [g], [lr_]); A(f"v_lshl_add_u32 {lr_}, {q}, 4, {lr_}", [q, lr_], [lr_]); A(f"v_add_u32 {lr_}, {L2B}, {lr_}", [lr_], [lr_])
    A(f"v_add_u32 {lw_}, {W}, {g}", [g, W], [lw_]); A(f"v_and_b32 {lw_}, 3, {lw_}", [lw_], [lw_]); A(f"v_lshl_add_u32 {lw_}, {lw_}, 2, {lr_}", [lw_, lr_], [lw_])
    for r in range(4): A(f"v_mov_b32 v{vOnes+r}, 0x3f803f80", [], [f"v{vOnes+r}"], prod={f"v{vOnes+r}": ("ones", r)})
    A(f"v_mov_b32 v{vMax}, 1.0", [], [f"v{vMax}"]); A(f"v_mov_b32 v{vMin}, 1.0", [], [f"v{vMin}"])
    A(f"s_mov_b32 s{sO0}, {(-0x2000) & 0xffffffff:#x}", [], [f"s{sO0}"], prod={f"s{sO0}": ("so", -1, 0)})
    A(f"s_mov_b32 s{sO1}, {(-0x1000) & 0xffffffff:#x}", [], [f"s{sO1}"], prod={f"s{sO1}": ("so", -1, 1)})
    A(f"s_mov_b32 s{sC2}, {CSC:#x}"); A(f"s_mov_b32 s{sC2+1}, {CSC:#x}"); A(f"s_mov_b32 s{sMask}, 0xffff0000")
    A(f"s_add_u32 s{sM}, s{sM0}, {3*8192}", [], [f"s{sM}"], prod={f"s{sM}": ("sM", 3)})
    x1, x2 = f"v{vVt}", t3
    A(f"v_lshrrev_b32 {x1}, 2, v0", ["v0"], [x1])
    A(f"v_and_b32 {x2}, 3, {x1}", [x1], [x2]); A(f"v_xor_b32 {x2}, {W}, {x2}", [x2, W], [x2]); A(f"v_lshlrev_b32 {x2}, 6, {x2}", [x2], [x2])
    A(f"v_lshl_add_u32 {x1}, {x1}, 8, {x2}", [x1, x2], [x1])
    A(f"v_and_b32 {x2}, 3, v0", ["v0"], [x2]); A(f"v_lshl_add_u32 {x1}, {x2}, 4, {x1}", [x1, x2], [x1])
    b0, c0 = s.c.units[0]
    s.add(wait_vm(s.need([("Q", b0, h) for h in range(2)])), barrier())
    for u in range(2):
        for j in range(4): s.add(qr2(b0, u, j))
    for x in range(8):
        l = ("K", 2*c0 + x // 4, x % 4)
        s.add(wait_vm(s.need([l]))); s.add(*prescale(l[1], l[2], True))

def startup(cfg, st):
    s = Start(cfg); U = cfg.units; NU = len(U)
    s.add(*st(0)); prologue(s, st)
    cnt = {}; m_of = []
    for (b, c) in U: m_of.append(cnt.get(b, 0)); cnt[b] = cnt.get(b, 0) + 1
    firstK = {}; lastQ = {}
    for n, (b, c) in enumerate(U): firstK.setdefault(c, n); lastQ[b] = n
    seenQ = {U[0][0]}; pend = []
    for c in sorted(firstK, key=firstK.get):
        if firstK[c] > 0: pend += [[firstK[c], ("K", 2*c + x // 4, x % 4), None] for x in range(8)]
    carry = []
    marks = cfg.marks
    def boundary(n):
        while pend and pend[0][0] <= n:
            if pend[0][2] is None: s.add(wait_vm(s.need([pend[0][1]]))); pend[0][2] = prescale(pend[0][1][1], pend[0][1][2], False)
            s.add(*pend[0][2]); pend.pop(0)
        ld = []
        nb = U[n+1][0] if n + 1 < NU else (NS if n + 1 == NU else None)
        if nb is not None and nb not in seenQ: ld += [("Q", nb, h) for h in range(2)]; seenQ.add(nb)
        if n >= 1 and n - 1 == firstK[U[n-1][1]]: ld += [("V", U[n-1][1], x) for x in range(8)]
        s.add(wait_both("all", s.need(ld)), barrier())
        if n >= 2 and n - 2 == firstK[U[n-2][1]]: s.ok.add(f"V{U[n-2][1] + 2}")
        if n < NU and lastQ[U[n][0]] == n and U[n][0] < 4: s.ok.add(f"Q{U[n][0] + NS}")
        if n in marks: s.add(*st(marks[n]))
    for n, (b, c) in enumerate(U):
        boundary(n)
        M = [qk2(b, c, x, j) for x in range(4) for j in range(4)]
        G = [[] for _ in range(34)]
        if n:
            pb, pc = U[n-1]; pm = m_of[n-1]
            M += [pv2(pb, pc, pm, k, u, dt) for k in range(4) for u in range(2) for dt in range(2)]
        else: M += [None] * 16
        M += [ones2(b, c, m_of[n], 0), ones2(b, c, m_of[n], 1)]
        nb = U[n+1][0] if n + 1 < NU else NS
        qg = (8, 16)
        if n:
            prs = [pr2(n-1, pb, pc, k, u) for k in (1, 2, 3) for u in range(2)]
            if n - 1 == firstK[pc]:
                a, r = vtr(pc, 0); G[0] += a + r[:2]; G[1] += r[2:]
                for x in range(3): G[2+x] += prs[2*x:2*x+2]
                for k in (1, 2, 3):
                    a, r = vtr(pc, k); G[4+2*k] += a + r[:2]; G[5+2*k] += r[2:]
                G[5] += [lacc2(pb, pm)]
                qg = (12, 16)
                for k in range(4): G[15+4*k].insert(0, wait_lgkm(sum((R("a", aV(k, pc, dt), 4) for dt in range(2)), []) + (sum((R("v", vP3[k-1][u], 4) for u in range(2)), []) if k else [])))
            else:
                for x in range(6): G[x].append(prs[x])
                G[6].append(lacc2(pb, pm))
                G[19].append(wait_lgkm(sum((R("v", vP3[k][u], 4) for k in range(3) for u in range(2)), [])))
        if m_of[n] and pb != b:
            G[20].append(lrd2(b, m_of[n]-1, 0)); G[21].append(lrd2(b, m_of[n]-1, 1)); G[31].append(wait_lgkm([f"v{vLa[0]}", f"v{vLa[1]}"]))
        if nb != b:
            for u in range(2):
                for j in range(4): G[qg[u]+j].append(qr2(nb, u, j))
        for x in range(4):
            for r in range(4): G[6+4*x+r].append(ex2(b, c, x, r))
            G[22+x] += [cv2(b, c, x, 0), cv2(b, c, x, 1)]
        G[24].insert(0, pw2(n, b, c, 0)); G[26].append(pw2(n, b, c, 1))
        for x, op in enumerate(carry): G[x * 6 // len(carry)].append(op)
        carry = []
        if n >= 2 and m_of[n-2] == 3:
            eb = U[n-2][0]
            G[12 if qg[0] == 8 else 22].insert(0, lr2(eb, 0)); G[13 if qg[0] == 8 else 23].insert(0, lr2(eb, 1))
            e = ep2(eb); cut = cfg.epcut
            for x, op in enumerate(e[:cut]): G[27 + x * 7 // cut].append(op)
            carry = e[cut:]
        free = [g for g in range(34) if sum(slots(x) for x in G[g]) == 0 and not any(x.kind == "dsw" and "b128" in x.text for x in G[g])]
        for g in range(34):
            if M[g] is not None: s.add(M[g])
            pre = [x for x in G[g] if x.kind in ("wait",)]; rest = [x for x in G[g] if x not in pre]
            s.add(*pre)
            s.add(*rest)
            if g in free and pend:
                dl = pend[0][0]
                left = sum(28 if p[2] is None else len(p[2]) for p in pend if p[0] == dl)
                room = len([y for y in free if y >= g]) + (dl - n - 1) * cfg.freeper
                k = max(2, -(-left // max(room, 1)))
                while k > 0 and pend and pend[0][0] == dl:
                    p = pend[0]
                    if p[2] is None:
                        i = s.idx[p[1]]
                        if i >= s.ni or s.C[i] + cfg.KM > s.us(): break
                        s.add(wait_vm(s.need([p[1]]))); p[2] = prescale(p[1][1], p[1][2], False)
                    s.add(p[2].pop(0)); k -= 1
                    if not p[2]: pend.pop(0)
            if not any(x.kind == "vmem" for x in G[g]): s.maybe_issue()
        if cfg.verbose: print(f"unit {n} {U[n]} ends {s.us():.2f} issued {s.ni}")
    boundary(NU)
    assert s.ni == len(s.L), (s.ni, len(s.L))
    return s.o, carry, s
Cfg.epcut = 25; Cfg.freeper = 13; Cfg.verbose = False
Cfg.marks = {0: 1, 1: 2, 8: 3, 9: 4, 16: 5, 17: 6, 24: 7, 25: 8, 32: 9}

def transition(cfg, carry):
    i = NS; U = cfg.units; n = len(U) - 1; pb, pc = U[n]; assert pb == NS - 1 and U[n-1][0] == NS - 2
    seq = "0 1 p0 2 3 p1 4 5 6 7 8 o 9 10 p2 11 12 13 14 15 p3".split()
    M = []; pos = {}
    for w in seq:
        pos[w] = len(M)
        if w == "o": M += [ones(i, 0, c) for c in range(4)]
        elif w[0] == "p": M += [pv2(pb, pc, 3, int(w[1]), u, dt) for u in range(2) for dt in range(2)]
        else: M += [qk(i, int(w), j) for j in range(4)]
    NG = len(M); G = [[] for _ in range(NG)]
    for x, (k, u) in enumerate([(k, u) for k in (1, 2, 3) for u in range(2)]): G[x].append(pr2(n, pb, pc, k, u))
    G[6].append(lacc2(pb, 3))
    G[8].append(lr2(NS-2, 0)); G[9].append(lr2(NS-2, 1))
    G[17].append(wait_both("all", [("w", ("Q", (i+1) & 3, h)) for h in range(2)])); G[18].append(barrier())
    a, b, c = q_next(i+4)
    G[22].append(a); G[23].append(b); G[24].append(c); G[25].append(m0set(i+4, 0)); G[26].append(qdma(i+4, 0)); G[28].append(m0set(i+4, 1)); G[30].append(qdma(i+4, 1))
    for j in range(4): G[pos["12"] + 2*j].append(qr(i+1, 0, j))
    G[NG-4].append(lr2(NS-1, 0)); G[NG-3].append(lr2(NS-1, 1))
    G[NG-1].append(wait_lgkm(sum((R("v", vQ[0][j], 4) for j in range(4)), [])))
    A = []
    for T in range(16):
        e = pos[str(T)] + 6; dl = pos[str(T+4)] - 1 if T + 4 < 16 else NG - 1
        if T < 8: dl = min(dl, pos["o"] - 2)
        for r in range(4 if T < 15 else 2): A.append((e, dl, ex(i, T, r)))
        if T < 15:
            A += [(e, dl, cv(i, T, 0)), (e, dl, cv(i, T, 1))]
            if T % 2:
                w = pw(i, (T % 8)//2, T//8)
                w.ldsw = w.ldsw + [(("Q", sl, h), "dead") for sl in range(4, 8) for h in range(2)]
                A.append((e, NG - 1, w))
    B = [(0, op) for op in carry] + [(16, op) for op in ep2(NS-2)]
    tot = sum(slots(x[2]) for x in A) + sum(slots(x[1]) for x in B)
    rate = tot / NG * 1.06; credit = 0.0
    out = []
    for g in range(NG):
        out.append(M[g]); out += G[g]
        credit = min(credit + rate, 4.0)
        while True:
            if A and A[0][0] <= g and (A[0][1] <= g or credit >= slots(A[0][2])): x = A.pop(0)[2]
            elif B and B[0][0] <= g and (credit >= slots(B[0][1]) or g == NG - 1) and not (B[0][1].kind == "vmem" and g < 31): x = B.pop(0)[1]
            else: break
            out.append(x); credit -= slots(x)
    assert not A and not B
    return out


def slow_block(i):
    o = []
    S0 = 128
    assert vPs[0][0] >= 0
    Sx = lambda T: SL + 4*T
    o.append(barrier())
    o += [m0set(i, 0), nop(0), qdma(i, 0), m0set(i, 1), nop(0), qdma(i, 1), wait_vm("all"), barrier()]
    for u in range(2):
        for j in range(4): o.append(qr(i, u, j))
    o.append(wait_lgkm("all"))
    for T in range(16):
        for j in range(4): o.append(qk(i, T, j, S=Sx(T)))
    m = [vLs[0], vLs[1]]
    for u in range(2):
        regs = [Sx(8*u + t) + r for t in range(8) for r in range(4)]
        o.append(valu(f"v_max_f32 v{m[u]}, v{regs[0]}, v{regs[1]}", [f"v{regs[0]}", f"v{regs[1]}"], [f"v{m[u]}"]))
        for x in range(2, 32, 2):
            o.append(valu(f"v_max3_f32 v{m[u]}, v{m[u]}, v{regs[x]}, v{regs[x+1]}", [f"v{m[u]}", f"v{regs[x]}", f"v{regs[x+1]}"], [f"v{m[u]}"]))
    o.append(I("dsw", f"ds_write2_b32 v{vT[0]}, v{m[0]}, v{m[1]} offset0:0 offset1:16", rd=[f"v{vT[0]}", f"v{m[0]}", f"v{m[1]}"], ldsw=[("MX", ("MX", i))]))
    o += [wait_lgkm("all"), barrier()]
    X = vPs[0][0]
    for x in range(8):
        o.append(I("dsr", f"ds_read_b128 {rng('v', X+4*x, 4)}, v{vT[1]} offset:{16*x}", rd=[f"v{vT[1]}"], wr=R("v", X+4*x, 4), ldsr=[("MX", ("MX", i))]))
    o.append(wait_lgkm("all"))
    for u in range(2):
        regs = [X + 16*u + x for x in range(16)]
        o.append(valu(f"v_max_f32 v{m[u]}, v{regs[0]}, v{regs[1]}", [f"v{regs[0]}", f"v{regs[1]}"], [f"v{m[u]}"]))
        for x in range(2, 16, 2):
            o.append(valu(f"v_max3_f32 v{m[u]}, v{m[u]}, v{regs[x]}, v{regs[x+1]}", [f"v{m[u]}", f"v{regs[x]}", f"v{regs[x+1]}"], [f"v{m[u]}"]))
    for T in range(16):
        for r in range(4):
            v = f"v{Sx(T)+r}"
            o.append(valu(f"v_sub_f32 {v}, {v}, v{m[T//8]}", [v, f"v{m[T//8]}"], [v], exp={v: (("S", i, T, 3), r)}, prod={v: (("S", i, T, 3), r)}))
        for r in range(4): o.append(ex(i, T, r, S=Sx(T)))
        o.append(cv(i, T, 0, S=Sx(T))); o.append(cv(i, T, 1, S=Sx(T)))
        if T % 2: o.append(pw(i, (T % 8)//2, T//8))
    for u in range(2):
        for c in range(4): o.append(ones(i, u, c))
    o += [lw(i), wait_lgkm("all"), barrier(), lr(i, 0), lr(i, 1)]
    for u in range(2):
        for dt in range(2):
            for c in range(4): o.append(pv(i, 0, c, u, dt))
    for mm in range(6):
        for c in range(4): o.append(pr(i, mm, c))
        o.append(wait_lgkm("all"))
        for dt in range(2):
            for c in range(4): o.append(pv(i, mm//2 + 1, c, mm % 2, dt))
    for u in range(2):
        o += [ladd(i, u, 0), ladd(i, u, 1), ladd(i, u, 2), rcp(i, u), so_next(i, u)]
        for dt in range(2):
            for r in range(4): o.append(omul(i, u, dt, r))
            o += [ocv(i, u, dt, 0), ocv(i, u, dt, 1)]
        o.append(ost(i, u))
    a = salu(f"s_add_u32 s{sQoff}, s{sQoff}, 0x2000", [f"s{sQoff}"], [f"s{sQoff}", "scc"]); a.prod = {f"s{sQoff}": ("qoff", i+4)}
    o.append(a)
    return o
SL = 192
def slow_setup():
    o = []
    A = lambda t, rd=(), wr=(), prod=None: o.append(valu(t, rd, wr, prod=prod) if t.startswith("v_") else salu(t, rd, wr))
    W = f"s{sW}"
    o.append(wait_both("all", "all"))
    x = salu(f"s_mov_b32 s{sQoff}, 0", [], [f"s{sQoff}"]); x.prod = {f"s{sQoff}": ("qoff", 100)}; o.append(x)
    x = salu(f"s_lshl_b32 s{sM}, {W}, 11", [W], [f"s{sM}"]); x.prod = {f"s{sM}": ("sM", 0)}; o.append(x)
    A(f"v_mov_b32 v{vQrd}, v{vL16}", [f"v{vL16}"], [f"v{vQrd}"], prod={f"v{vQrd}": ("qrd", 0)})
    x = salu(f"s_mov_b32 s{sO0}, {(-0x2000) & 0xffffffff:#x}", [], [f"s{sO0}"]); x.prod = {f"s{sO0}": ("so", 99, 0)}; o.append(x)
    x = salu(f"s_mov_b32 s{sO1}, {(-0x1000) & 0xffffffff:#x}", [], [f"s{sO1}"]); x.prod = {f"s{sO1}": ("so", 99, 1)}; o.append(x)
    A(f"v_and_b32 v{vT[1]}, 15, v0", ["v0"], [f"v{vT[1]}"]); A(f"v_lshlrev_b32 v{vT[1]}, 7, v{vT[1]}", [f"v{vT[1]}"], [f"v{vT[1]}"])
    A(f"v_add_u32 v{vT[1]}, {MXB}, v{vT[1]}", [f"v{vT[1]}"], [f"v{vT[1]}"])
    A(f"v_lshrrev_b32 v{vT[0]}, 4, v0", ["v0"], [f"v{vT[0]}"]); A(f"s_lshl_b32 s{sT}, {W}, 2", [W])
    A(f"v_add_u32 v{vT[0]}, s{sT}, v{vT[0]}", [f"v{vT[0]}"], [f"v{vT[0]}"])
    A(f"v_lshl_add_u32 v{vT[0]}, v{vT[0]}, 2, v{vT[1]}", [f"v{vT[0]}", f"v{vT[1]}"], [f"v{vT[0]}"])
    A(f"s_mov_b32 s{sCnt}, {NB}")
    return o

def stamp(p):
    return [raw(f"s_memtime s[{40+2*p}:{41+2*p}]"), raw(f"s_memrealtime s[{70+2*p}:{71+2*p}]"), wait_lgkm("all")]
def dump(np_):
    o = [raw("s_load_dwordx2 s[4:5], s[0:1], 40"), raw("s_waitcnt lgkmcnt(0)"), raw("s_mov_b32 s6, 0x1000000"), raw("s_mov_b32 s7, 0x20000"),
         raw(f"s_lshl_b32 s3, s2, 2"), raw(f"s_add_u32 s3, s3, s{sW}"), raw("s_lshl_b32 s3, s3, 8"), raw("v_mov_b32 v1, 0"), raw("s_mov_b64 exec, 1")]
    for p in range(np_):
        for (b, off) in ((40, 0), (70, 128)):
            o += [raw(f"v_mov_b32 v2, s{b+2*p}"), raw(f"v_mov_b32 v3, s{b+1+2*p}"), raw(f"buffer_store_dwordx2 v[2:3], v1, s[4:7], s3 offen offset:{off+8*p}"), raw("s_nop 1")]
    o += [raw("s_waitcnt vmcnt(0)"), raw("s_endpgm")]
    return o
def dump_dbg(np_):
    o = [raw("s_load_dwordx2 s[4:5], s[0:1], 32"), raw("s_waitcnt lgkmcnt(0)"), raw("s_mov_b32 s6, 64"), raw("s_mov_b32 s7, 0x20000"),
         raw("s_mov_b32 s3, 64"), raw("s_cmp_eq_u32 s2, 7"), raw("s_cselect_b32 s3, 0, s3"), raw("s_cmp_eq_u32 s2, 133"), raw("s_cselect_b32 s3, 32, s3"),
         raw(f"s_cmp_eq_u32 s{sW}, 0"), raw("s_cselect_b32 s3, s3, 64"), raw("v_mov_b32 v1, 0"), raw("s_mov_b64 exec, 1")]
    for p in range(1, np_):
        o += [raw(f"s_sub_u32 s38, s{70+2*p}, s70"), raw("v_mov_b32 v2, s38"), raw(f"buffer_store_dword v2, v1, s[4:7], s3 offen offset:{4*(p-1)}"), raw("s_nop 1")]
    o += [raw("s_waitcnt vmcnt(0)"), raw("s_endpgm")]
    return o
def diag(a, b, sub):
    o = [raw(f"s_sub_u32 s38, s{70+2*b}, s{70+2*a}"), raw(f"s_add_u32 s38, s38, {15000-sub}"), label("L_diag"), raw("s_memrealtime s[4:5]"), raw("s_waitcnt lgkmcnt(0)"),
         raw("s_sub_u32 s4, s4, s70"), raw("s_cmp_lt_u32 s4, s38"), raw("s_cbranch_scc1 L_diag"), raw("s_endpgm")]
    return o
def keyed(name, lst):
    for n, x in enumerate(lst): x.key = (name, n)
    return lst

def generate(path, force_slow=False, prof=False, knock=None, cfg=Cfg):
    pieces = {}
    trace = []
    def inst(name, lst):
        keyed(name, lst)
        if name in pieces:
            assert [x.text for x in pieces[name]] == [x.text for x in lst], name
        else: pieces[name] = lst
        trace.extend(lst)
    st = (lambda p: stamp(p)) if prof else (lambda p: [])
    so, carry, S = startup(cfg, (lambda p: stamp(p)[:2]) if prof else st)
    inst("pro", so)
    inst("tr", transition(cfg, carry) + st(10) + [salu(f"s_mov_b32 s{sCnt}, {(NB - 1 - NS - 1)//2}")])
    for i in range(NS + 1, NB - 1):
        body = iteration(i)
        if i == NS + 1:
            for x in body:
                if x.ldsw and x.ldsw[0][0][0] == "P" and x.ldsw[0][0][1] == 1:
                    x.ldsw = x.ldsw + [(("X", p, u), "dead") for p in range(2) for u in range(2)] + [(("L2", b, u), "dead") for b in range(NS) for u in range(2)]
                if x.ldsw and x.ldsw[0][0][0] == "L": x.ldsw = x.ldsw + [(("V", 0, n), "dead") for n in range(8)]
        if not i & 1: body += [salu(f"s_sub_u32 s{sCnt}, s{sCnt}, 1"), salu(f"s_cmp_lg_u32 s{sCnt}, 0"), salu("s_cbranch_scc1 L_loop")]
        inst("odd" if i & 1 else "even", body)
    inst("it45", st(11) + iteration(NB-1, DMA=False))
    inst("it46", iteration(NB, QK=False, DMA=False))
    inst("it47", iteration(NB+1, QK=False, PV=False, DMA=False) + st(12) + ([wait_vm("all")] + st(13) + (dump(14) if prof == 1 else dump_dbg(9) if prof == 2 else diag(*prof)) if prof else []))
    chkc = [valu(f"v_cmp_nge_f32 vcc, s{sT}, v{vMax}", [f"v{vMax}"], ["vcc"]),
            valu(f"v_cmp_nle_f32 s[38:39], s{sT2}, v{vMin}", [f"v{vMin}"], ["s38", "s39"]),
            nop(4), salu("s_or_b64 vcc, vcc, s[38:39]", ["vcc", "s38"]),
            salu("s_cbranch_scc0 L_end" if not force_slow else "s_nop 0")]
    inst("chk", [salu(f"s_mov_b32 s{sT}, {LHI:#x}"), salu(f"s_mov_b32 s{sT2}, {LLO:#x}")] + chkc)
    inst("slow0", slow_setup())
    for i in (100, 104, 108):
        b = slow_block(i)
        for x in b:
            for r, tg in list(x.exp.items()):
                if isinstance(tg, tuple) and tg[0] == "so" and x.text.startswith("s_add"): del x.exp[r]
                if isinstance(tg, tuple) and tg[0] == "qrd": del x.exp[r]
        b += [salu(f"s_sub_u32 s{sCnt}, s{sCnt}, 1"), salu(f"s_cmp_lg_u32 s{sCnt}, 0"), salu("s_cbranch_scc1 L_slow")]
        inst("slow", b)
    waits, nops, errs = resolve(trace, {"pro", "tr", "it46", "it47", "chk", "slow0", "slow"})
    if errs:
        for e in errs[:40]: print("ERR", e)
        raise SystemExit(f"{len(errs)} checker errors")
    ref = open("standalone__gqa_softmax__near_ridge.s.ref").read().split("\n")
    hdr = [l for l in ref if l.startswith(";") and "@launch" not in l]
    L = hdr + [f"; @launch grid=(256,1,1) block=(256,1,1) lds={LDS}", '.amdgcn_target "amdgcn-amd-amdhsa--gfx950"', ".text", f".globl {KN}", ".p2align 8",
         f".type {KN},@function", f"{KN}:", "    s_cmp_ge_u32 s2, 0x100", "    s_cbranch_scc1 L_end"]
    order = ["pro", "tr", "odd", "even", "it45", "it46", "it47", "chk", "slow0", "slow"]
    for name in order:
        if name == "odd": L.append("L_loop:")
        if name == "slow": L.append("L_slow:")
        L.append(f"; ---- {name}")
        for x in pieces[name]:
            if knock and name in ("even", "odd") and knock(x): continue
            L += emit(x, waits, nops)
    L += ["L_end:", "    s_endpgm", '.section .rodata,"a"', ".p2align 6", f".amdhsa_kernel {KN}", "  .amdhsa_next_free_vgpr 512", "  .amdhsa_next_free_sgpr 102",
          "  .amdhsa_accum_offset 256", "  .amdhsa_group_segment_fixed_size 0", "  .amdhsa_kernarg_size 48", "  .amdhsa_user_sgpr_count 2",
          "  .amdhsa_user_sgpr_kernarg_segment_ptr 1", "  .amdhsa_system_sgpr_workgroup_id_x 1", ".end_amdhsa_kernel", ""]
    open(path, "w").write("\n".join(L))
    build(path)
    return nops, S

if __name__ == "__main__":
    print("VTOP", VTOP, al.p)
    Cfg.verbose = True
    n, S = generate("k3.s")
    Cfg.verbose = False
    generate("k3p.s", prof=1)
    generate("k3s.s", force_slow=True)
    print(len(n), sum(n.values()), {k: v for k, v in n.items() if k[0] not in ("slow",)})
    print(S.log)
```

```python
import gen2a
from gen2a import Cfg
class C(Cfg): pass
C.F = 1600
C.loads = "Q0 K0.0 V0.0 K0.1-7 Q1 V0.1-7 Q2 Q3 Q4 Q5 Q6 Q7 K1 V1 K2 V2 K3 V3 Q8 Q9 Q10 Q11"
gen2a.generate("k3a.s", cfg=C)
gen2a.generate("k3ap.s", prof=1, cfg=C)
gen2a.generate("k3as.s", force_slow=True, cfg=C)
gen2a.generate("k3b.s")
```

```python
import re

def R(p, i, n=1):
    return [f"{p}{i+k}" for k in range(n)]
def rng(p, i, n):
    return f"{p}{i}" if n == 1 else f"{p}[{i}:{i+n-1}]"

class I:
    __slots__ = ("kind", "text", "rd", "wr", "exp", "prod", "ldsr", "ldsw", "c", "targets", "vtargets", "key", "nops", "n", "cmt")
    def __init__(s, kind, text, rd=(), wr=(), exp=None, prod=None, ldsr=None, ldsw=None, c=None,
                 targets=None, vtargets=None, n=0, cmt=None):
        s.kind = kind; s.text = text; s.rd = list(rd); s.wr = list(wr)
        s.exp = exp or {}; s.prod = prod or {}
        s.ldsr = ldsr; s.ldsw = ldsw; s.c = c or []
        s.targets = targets; s.vtargets = vtargets; s.key = None; s.n = n; s.cmt = cmt

def tagmap(regs, tag):
    return {r: (tag, k) for k, r in enumerate(regs)}

def mfma(d, a, b, c=None, ta=None, tb=None, tc=None, td=None):
    D = R("v", d, 4); A = R(a[0], a[1], 4); B = R(b[0], b[1], 4) if isinstance(b, tuple) else R("v", b, 4)
    bt = rng(b[0], b[1], 4) if isinstance(b, tuple) else rng("v", b, 4)
    ctext = rng("v", d, 4) if c else "0"
    exp = {}
    if ta is not None: exp.update(tagmap(A, ta))
    if tb is not None: exp.update(tagmap(B, tb))
    if c and tc is not None: exp.update(tagmap(D, tc))
    prod = tagmap(D, td) if td is not None else {}
    return I("mfma", f"v_mfma_f32_16x16x32_bf16 {rng('v', d, 4)}, {rng(a[0], a[1], 4)}, {bt}, {ctext}",
             rd=A + B + (D if c else []), wr=D, exp=exp, prod=prod, c=(D if c else []))

def valu(text, rd, wr, exp=None, prod=None, trans=False):
    return I("trans" if trans else "valu", text, rd=rd, wr=wr, exp=exp, prod=prod)
def salu(text, rd=(), wr=()):
    return I("salu", text, rd=rd, wr=wr)
def wait_lgkm(targets):
    return I("wait", None, targets=targets)
def wait_vm(vtargets):
    return I("wait", None, vtargets=vtargets)
def wait_both(targets, vtargets):
    return I("wait", None, targets=targets, vtargets=vtargets)
def barrier():
    return I("bar", "s_barrier")
def nop(k):
    return I("nop", f"s_nop {k}", n=k)
def label(name):
    return I("label", f"{name}:")
def raw(text):
    return I("raw", text)

class CheckError(Exception):
    pass

class Sim:
    def __init__(s, waits, nops, autonop, count):
        s.waits = waits
        s.nops = nops
        s.autonop = autonop
        s.count = count
        s.tag = {}
        s.lastw = {}
        s.lastc = {}
        s.laststore = {}
        s.pend = {}
        s.lseq = 0; s.vseq = 0; s.ldone = 0; s.vdone = 0
        s.lops = {}; s.vops = {}
        s.reg = {}
        s.epoch = 0
        s.cnt = 0; s.t = 0; s.tm = -100
        s.errors = []; s.changed = False
    def err(s, ins, msg):
        s.errors.append(f"{ins.key} {ins.text}: {msg}")
    def region(s, name):
        if name not in s.reg:
            s.reg[name] = dict(tag=None, w=None, wep=None, rp=set(), rep=-1)
        return s.reg[name]
    def complete(s, cls, upto):
        ops = s.lops if cls == "l" else s.vops
        cur = s.ldone if cls == "l" else s.vdone
        for q in range(cur + 1, upto + 1):
            for (rn, rw) in ops.pop(q, []):
                g = s.region(rn)
                if rw == "w":
                    if g["w"] == (cls, q): g["wep"] = s.epoch
                else:
                    g["rp"].discard((cls, q)); g["rep"] = max(g["rep"], s.epoch)
        if cls == "l": s.ldone = max(cur, upto)
        else: s.vdone = max(cur, upto)
    def need(s, ins, prodcnt, prodt, states, timeok=None):
        have = s.cnt - prodcnt - 1
        if have >= states: return 0
        if timeok is not None and (s.tnext - prodt - 1) >= timeok: return 0
        return states - have
    def step(s, ins):
        k = ins.kind
        if k in ("label", "raw"): return
        extra = s.nops.get(ins.key, 0)
        s.cnt += extra; s.t += extra
        s.tnext = s.t + 1
        if k == "mfma": s.tnext = max(s.tnext, s.tm + 4)
        s.cnt += 1
        miss = 0; why = ""
        def upd(m, w):
            nonlocal miss, why
            if m > miss: miss = m; why = w
        isv = k in ("valu", "trans")
        for r in ins.rd:
            lw = s.lastw.get(r)
            if lw:
                pk, pc, pt = lw
                if pk == "mfma":
                    if k == "mfma" and r in ins.c:
                        pass
                    else:
                        upd(s.need(ins, pc, pt, 8, 12), f"mfma D {r} -> read")
                elif pk in ("valu", "trans"):
                    if k == "mfma": upd(s.need(ins, pc, pt, 2), f"valu {r} -> mfma")
                    if pk == "trans" and k == "valu": upd(s.need(ins, pc, pt, 1), f"trans {r} -> valu")
                    if r[0] == "s" or r == "vcc":
                        if k in ("vmem",): upd(s.need(ins, pc, pt, 5), f"valu sgpr {r} -> vmem")
                        if isv: upd(s.need(ins, pc, pt, 2), f"valu sgpr {r} -> valu")
                    if "readfirstlane" in (ins.text or "") or "readlane" in (ins.text or ""):
                        upd(s.need(ins, pc, pt, 1), f"valu {r} -> readlane")
                elif pk == "salu" and r == "m0" and k == "vmem":
                    upd(s.need(ins, pc, pt, 1), "m0 -> dma")
            if r in s.pend and not s.count:
                cls, q = s.pend[r]
                if q > (s.ldone if cls == "l" else s.vdone): s.err(ins, f"read of {r} with load in flight")
        for r in ins.wr:
            lw = s.lastw.get(r)
            if lw and lw[0] == "mfma" and not (k == "mfma"):
                upd(s.need(ins, lw[1], lw[2], 8, 12), f"mfma D {r} -> write")
            if lw and lw[0] == "mfma" and k == "mfma" and r not in ins.c:
                pass
            if isv and r in s.lastc: upd(s.need(ins, s.lastc[r], 0, 3), f"srcC {r} WAR")
            if r in s.laststore: upd(s.need(ins, s.laststore[r], 0, 2), f"store data {r} WAR")
            if r in s.pend and not s.count:
                cls, q = s.pend[r]
                if q > (s.ldone if cls == "l" else s.vdone): s.err(ins, f"write of {r} with load in flight")
        if miss:
            if ins.key[0] in s.autonop:
                s.nops[ins.key] = s.nops.get(ins.key, 0) + miss; s.changed = True
                s.cnt += miss; s.t += miss; s.tnext = s.t + 1
                if k == "mfma": s.tnext = max(s.tnext, s.tm + 4)
            elif not s.count:
                s.err(ins, f"hazard: {why} missing {miss}")
        s.t = s.tnext
        if k == "mfma": s.tm = s.t
        if k == "nop": s.cnt += ins.n; s.t += ins.n
        if not s.count:
            for r, tg in ins.exp.items():
                if s.tag.get(r) != tg: s.err(ins, f"{r} holds {s.tag.get(r)} expected {tg}")
        for r in ins.wr:
            s.tag[r] = ins.prod.get(r)
            s.lastw[r] = (k, s.cnt, s.t)
            s.pend.pop(r, None)
        for r in ins.c: s.lastc[r] = s.cnt
        if k in ("dsr", "dsw"):
            s.lseq += 1; cls, q, ops = "l", s.lseq, s.lops
        elif k == "vmem":
            s.vseq += 1; cls, q, ops = "v", s.vseq, s.vops
        if k in ("dsr", "dsw", "vmem"):
            ops[q] = []
            if k != "dsw":
                for r in ins.wr: s.pend[r] = (cls, q)
            if k == "vmem" and "store" in ins.text:
                for r in ins.rd:
                    if r[0] == "v": s.laststore[r] = s.cnt
            if ins.ldsr:
                for (rn, tg, *own) in ins.ldsr:
                    g = s.region(rn)
                    if own:
                        if not s.count and g["tag"] != tg: s.err(ins, f"LDS {rn} holds {g['tag']} expected {tg}")
                        continue
                    if not s.count:
                        if g["tag"] != tg: s.err(ins, f"LDS {rn} holds {g['tag']} expected {tg}")
                        if g["wep"] is None or g["wep"] >= s.epoch: s.err(ins, f"LDS {rn} read without completed write + barrier")
                    g["rp"].add((cls, q)); ops[q].append((rn, "r"))
            if ins.ldsw:
                for (rn, tg) in ins.ldsw:
                    g = s.region(rn)
                    if not s.count:
                        if g["rp"] or g["rep"] >= s.epoch: s.err(ins, f"LDS {rn} overwritten before readers finished + barrier")
                    g["tag"] = tg; g["w"] = (cls, q); g["wep"] = None; ops[q].append((rn, "w"))
        if k == "bar": s.epoch += 1
        if k == "wait":
            w = s.waits.setdefault(ins.key, [None, None])
            for idx, (tg, cls) in enumerate(((ins.targets, "l"), (ins.vtargets, "v"))):
                if tg is None: continue
                seq = s.lseq if cls == "l" else s.vseq
                if s.count:
                    if tg == "all": N = 0
                    elif isinstance(tg, int): N = tg
                    else:
                        q = 0
                        for x in tg:
                            if isinstance(x, tuple):
                                g = s.region(x[1])
                                if x[0] == "w" and g["w"] and g["w"][0] == cls: q = max(q, g["w"][1])
                                if x[0] == "r":
                                    for (c2, q2) in g["rp"]:
                                        if c2 == cls: q = max(q, q2)
                            elif x in s.pend and s.pend[x][0] == cls: q = max(q, s.pend[x][1])
                        N = seq - q if q else None
                    if N is not None:
                        N = min(N, 15 if cls == "l" else 63)
                        w[idx] = N if w[idx] is None else min(w[idx], N)
                        s.complete(cls, seq - N)
                else:
                    if w[idx] is not None: s.complete(cls, seq - w[idx])

def resolve(trace, autonop, init=None):
    nops = {}
    for it in range(50):
        waits = {}
        sim = Sim(waits, nops, autonop, True)
        for ins in trace: sim.step(ins)
        if not sim.changed: break
    sim = Sim(waits, nops, set(), False)
    for ins in trace: sim.step(ins)
    return waits, nops, sim.errors

def emit(ins, waits, nops):
    out = []
    e = nops.get(ins.key, 0)
    while e > 0:
        k = min(e, 8); out.append(f"    s_nop {k-1}"); e -= k
    if ins.kind == "wait":
        w = waits.get(ins.key, [None, None])
        parts = []
        if w[1] is not None: parts.append(f"vmcnt({w[1]})")
        if w[0] is not None: parts.append(f"lgkmcnt({w[0]})")
        if parts: out.append("    s_waitcnt " + " ".join(parts))
        else: out.append("    s_nop 0")
    elif ins.kind == "label":
        out.append(ins.text)
    else:
        out.append("    " + ins.text + (f"    ; {ins.cmt}" if ins.cmt else ""))
    return out
```

```python
import sys, struct, math
from asmgen import *
from build import build
KN = "standalone__gqa_softmax__near_ridge_kernel"
NB = 46
QB = 0
PB = 32768
L2B = 69632
LOFF = 28672
MXB = 99328
VS = [98304, 131072]
LDS = 163840
NS = 8
sQ, sK, sV, sO = 8, 12, 16, 20
sM0 = 24; sKoff = 25; sVoff = 26; sVl = 27; sC2 = 4
sW = 28; sQoff = 29; sM = 30; sO0 = 31; sO1 = 32; sCnt = 33; sT = 34; sC = 35; sMask = 36; sT2 = 37
class Alloc:
    def __init__(s, start): s.p = start
    def get(s, n, al=4):
        s.p = (s.p + al - 1) // al * al; r = s.p; s.p += n; assert s.p <= 256, "out of vgprs"; return r
al = Alloc(1)
vL16 = al.get(1,1); vQrd = al.get(1,1); vPw = al.get(1,1); vPr = [al.get(1,1) for _ in range(3)]
vLw = al.get(1,1); vLr = al.get(1,1); vQd = al.get(1,1); vO = al.get(1,1); vMax = al.get(1,1); vMin = al.get(1,1)
vT = [al.get(1,1) for _ in range(4)]
vLs = [al.get(1,1) for _ in range(2)]; vRc = [al.get(1,1) for _ in range(2)]
vVd = al.get(1,1); vVt = al.get(1,1); vVa = al.get(1,1)
vOnes = al.get(4)
vQ = [[al.get(4) for j in range(4)] for u in range(2)]
vS = [al.get(4) for _ in range(4)]
vPo = {(c,u): al.get(4) for u in range(2) for c in range(4)}
vPoAlt = al.get(4)
vPs = [[al.get(4) for c in range(4)] for k in range(3)]
vOa = [[[al.get(4) for dt in range(2)] for u in range(2)] for par in range(2)]
vLa = [al.get(4) for u in range(2)]
vLd = [al.get(4) for u in range(2)]
vOut = [al.get(4) for u in range(2)]
VTOP = al.p
top = [al.get(4) for _ in range(10)]
_o = lambda l: [[l[0], l[1]], [l[2], l[3]]]
_po = [vPo[(c,u)] for u in range(2) for c in range(4)]
_ps = [vPs[k][c] for k in range(3) for c in range(4)]
O2 = [_o(_po[0:4]), _o(_po[4:8]), _o(_ps[0:4]), _o(_ps[4:8]), _o(_ps[8:12]), _o(top[0:4]), vOa[0], vOa[1]]
vP2 = top[4:6]
vP3 = [vOut, top[6:8], top[8:10]]
assert vLd[1] == vLd[0] + 4
def aK(t, j): return 16*t + 4*j
def aV(k, c, dt): return 128 + 32*k + 8*c + 4*dt
def Po(c, u, i): return vPoAlt if (c, u) == (0, 0) and (i & 1) else vPo[(c, u)]
def f32(x): return struct.unpack("<I", struct.pack("<f", x))[0]
CSC = f32(math.log2(math.e) / math.sqrt(128.0))
LHI = f32(2.0**40); LLO = f32(2.0**-40)

def qk(i, T, j, S=None):
    u, t = T // 8, T % 8
    S = vS[T % 4] if S is None else S
    return mfma(S, ("a", aK(t, j)), vQ[u][j], c=(j > 0), ta=("K", t, j), tb=("Q", i, u, j),
                tc=("S", i, T, j-1), td=("S", i, T, j))
def ex(i, T, r, S=None):
    S = vS[T % 4] if S is None else S
    v = f"v{S+r}"
    return valu(f"v_exp_f32 {v}, {v}", [v], [v], exp={v: (("S", i, T, 3), r)}, prod={v: (("E", i, T), r)}, trans=True)
def cv(i, T, h, S=None):
    S = vS[T % 4] if S is None else S
    u, c, half = T // 8, (T % 8) // 2, T % 2
    d = Po(c, u, i) + 2*half + h
    a, b = f"v{S+2*h}", f"v{S+2*h+1}"
    return valu(f"v_cvt_pk_bf16_f32 v{d}, {a}, {b}", [a, b], [f"v{d}"],
                exp={a: (("E", i, T), 2*h), b: (("E", i, T), 2*h+1)}, prod={f"v{d}": (("P", i, 0, c, u), 2*half+h)})
def pw(i, c, u):
    d = Po(c, u, i); buf = i & 1
    return I("dsw", f"ds_write_b128 v{vPw}, {rng('v', d, 4)} offset:{buf*32768 + (u*4+c)*1024}",
             rd=[f"v{vPw}"] + R("v", d, 4), exp=tagmap(R("v", d, 4), ("P", i, 0, c, u)),
             ldsw=[(("P", buf, c, u), ("P", i))])
def pr(i, m, c):
    k, u = m // 2, m % 2; buf = i & 1; d = vPs[m % 3][c]
    return I("dsr", f"ds_read_b128 {rng('v', d, 4)}, v{vPr[k]} offset:{buf*32768 + (u*4+c)*1024}",
             rd=[f"v{vPr[k]}"], wr=R("v", d, 4), prod=tagmap(R("v", d, 4), ("P", i, k+1, c, u)),
             ldsr=[(("P", buf, c, u), ("P", i))])
def qr(i, u, j):
    d = vQ[u][j]
    return I("dsr", f"ds_read_b128 {rng('v', d, 4)}, v{vQrd} offset:{(i & 1)*8192 + (u*4+j)*1024}",
             rd=[f"v{vQrd}"], wr=R("v", d, 4), exp={f"v{vQrd}": ("qrd", (i >> 1) & 1)},
             prod=tagmap(R("v", d, 4), ("Q", i, u, j)), ldsr=[(("Q", i & 3, (u*4+j) & 1), ("Q", i))])
def pv(i, k, c, u, dt):
    d = vOa[i & 1][u][dt]
    b = Po(c, u, i) if k == 0 else vPs[((k-1)*2 + u) % 3][c]
    n = k*4 + c
    return mfma(d, ("a", aV(k, c, dt)), b, c=(n > 0), ta=("V", k, c, dt), tb=("P", i, k, c, u),
                tc=("O", i, u, dt, n-1), td=("O", i, u, dt, n))
def ones(i, u, c):
    return mfma(vLa[u], ("v", vOnes), Po(c, u, i), c=(c > 0), ta="ones", tb=("P", i, 0, c, u),
                tc=("L", i, u, c-1), td=("L", i, u, c))
def lw(i):
    buf = i & 1
    return I("dsw", f"ds_write2st64_b32 v{vLw}, v{vLa[0]}, v{vLa[1]} offset0:{LOFF//256+buf*2} offset1:{LOFF//256+buf*2+1}",
             rd=[f"v{vLw}", f"v{vLa[0]}", f"v{vLa[1]}"],
             exp={f"v{vLa[0]}": (("L", i, 0, 3), 0), f"v{vLa[1]}": (("L", i, 1, 3), 0)}, ldsw=[(("L", buf), ("L", i))])
def lr(i, u):
    buf = i & 1; d = vLd[u]
    return I("dsr", f"ds_read_b128 {rng('v', d, 4)}, v{vLr} offset:{LOFF + buf*512 + u*256}", rd=[f"v{vLr}"], wr=R("v", d, 4),
             prod=tagmap(R("v", d, 4), ("LP", i, u)), ldsr=[(("L", buf), ("L", i))])
def ladd(i, u, s):
    d = vLd[u]
    if s == 0: return valu(f"v_add_f32 v{d}, v{d}, v{d+1}", R("v", d, 2), [f"v{d}"], exp={f"v{d}": (("LP", i, u), 0), f"v{d+1}": (("LP", i, u), 1)}, prod={f"v{d}": ("LA", i, u)})
    if s == 1: return valu(f"v_add_f32 v{d+2}, v{d+2}, v{d+3}", R("v", d+2, 2), [f"v{d+2}"], exp={f"v{d+2}": (("LP", i, u), 2), f"v{d+3}": (("LP", i, u), 3)}, prod={f"v{d+2}": ("LB", i, u)})
    return valu(f"v_add_f32 v{vLs[u]}, v{d}, v{d+2}", [f"v{d}", f"v{d+2}"], [f"v{vLs[u]}"], exp={f"v{d}": ("LA", i, u), f"v{d+2}": ("LB", i, u)}, prod={f"v{vLs[u]}": ("LS", i, u)})
def rcp(i, u):
    return valu(f"v_rcp_f32 v{vRc[u]}, v{vLs[u]}", [f"v{vLs[u]}"], [f"v{vRc[u]}"], exp={f"v{vLs[u]}": ("LS", i, u)}, prod={f"v{vRc[u]}": ("RC", i, u)}, trans=True)
def chk(i, mx):
    v = vMax if mx else vMin
    return valu(f"v_{'max' if mx else 'min'}3_f32 v{v}, v{v}, v{vLs[0]}, v{vLs[1]}", [f"v{v}", f"v{vLs[0]}", f"v{vLs[1]}"], [f"v{v}"],
                exp={f"v{vLs[0]}": ("LS", i, 0), f"v{vLs[1]}": ("LS", i, 1)})
def omul(i, u, dt, r):
    v = f"v{vOa[i & 1][u][dt] + r}"
    return valu(f"v_mul_f32 {v}, {v}, v{vRc[u]}", [v, f"v{vRc[u]}"], [v], exp={v: (("O", i, u, dt, 15), r), f"v{vRc[u]}": ("RC", i, u)}, prod={v: (("N", i, u, dt), r)})
def ocv(i, u, dt, h):
    s = vOa[i & 1][u][dt] + 2*h; d = vOut[u] + 2*dt + h
    return valu(f"v_cvt_pk_bf16_f32 v{d}, v{s}, v{s+1}", R("v", s, 2), [f"v{d}"],
                exp={f"v{s}": (("N", i, u, dt), 2*h), f"v{s+1}": (("N", i, u, dt), 2*h+1)}, prod={f"v{d}": (("OUT", i, u), 2*dt+h)})
STFLAG = " nt"
KFLAG = " nt"
VFLAG = " nt"
def ost(i, u):
    so = sO0 if u == 0 else sO1
    return I("vmem", f"buffer_store_dwordx4 {rng('v', vOut[u], 4)}, v{vO}, s[{sO}:{sO+3}], s{so} offen{STFLAG}",
             rd=R("v", vOut[u], 4) + [f"v{vO}", f"s{so}"], exp={**tagmap(R("v", vOut[u], 4), ("OUT", i, u)), f"s{so}": ("so", i, u)})
def so_next(i, u):
    so = sO0 if u == 0 else sO1
    x = salu(f"s_add_u32 s{so}, s{so}, 0x2000", [f"s{so}"], [f"s{so}", "scc"]); x.exp = {f"s{so}": ("so", i-1, u)}; x.prod = {f"s{so}": ("so", i, u)}; return x
QFLAG = " nt"
def m0set(i, h):
    x = salu(f"s_mov_b32 m0, s{sM}" if h == 0 else f"s_add_u32 m0, s{sM}, {1024-64}", [f"s{sM}"], ["m0"] + (["scc"] if h else []))
    x.exp = {f"s{sM}": ("sM", i & 3)}; x.prod = {"m0": ("m0", i & 3, h)}; return x
def qdma(i, h):
    return I("vmem", f"buffer_load_dwordx4 v{vQd}, s[{sQ}:{sQ+3}], s{sQoff} offen{' offset:64' if h else ''}{QFLAG} lds",
             rd=[f"v{vQd}", f"s{sQoff}", "m0"], exp={"m0": ("m0", i & 3, h), f"s{sQoff}": ("qoff", i)}, ldsw=[(("Q", i & 3, h), ("Q", i))])
def q_next(i):
    a = salu(f"s_add_u32 s{sQoff}, s{sQoff}, 0x2000", [f"s{sQoff}"], [f"s{sQoff}", "scc"]); a.exp = {f"s{sQoff}": ("qoff", i-1)}; a.prod = {f"s{sQoff}": ("qoff", i)}
    b = salu(f"s_add_u32 s{sM}, s{sM}, 0x2000", [f"s{sM}"], [f"s{sM}", "scc"]); b.exp = {f"s{sM}": ("sM", (i-1) & 3)}; b.prod = {f"s{sM}": ("sM'", i & 3)}
    c = salu(f"s_and_b32 s{sM}, s{sM}, 0x7fff", [f"s{sM}"], [f"s{sM}", "scc"]); c.exp = {f"s{sM}": ("sM'", i & 3)}; c.prod = {f"s{sM}": ("sM", i & 3)}
    return [a, b, c]
def qtoggle(i):
    v = f"v{vQrd}"
    return valu(f"v_xor_b32 {v}, 0x4000, {v}", [v], [v], exp={v: ("qrd", ((i >> 1) & 1) ^ 1)}, prod={v: ("qrd", (i >> 1) & 1)})

def iteration(i, QK=True, PV=True, EP=True, DMA=True):
    M = []
    pvseq = [(k, u, dt) for k in range(4) for u in range(2) for dt in range(2)]
    for T in range(16):
        M += [qk(i, T, j) if QK else None for j in range(4)]
        if T == 0: M += [ones(i-1, 1, c) if PV else None for c in range(4)]
        if T == 8: M += [ones(i, 0, c) if QK else None for c in range(4)]
        k, u, dt = pvseq[T]
        M += [pv(i-1, k, c, u, dt) if PV else None for c in range(4)]
    assert len(M) == 136
    G = [[] for _ in range(136)]
    def put(g, *ins):
        for x in ins:
            if x is not None: G[g].append(x)
    Rr = [6, 18, 26, 34, 42, 50, 58, 66, 74, 86, 94, 102, 110, 118, 126, 134]
    cg = {T: (Rr[T]+4, Rr[T]+5) for T in range(16)}
    cg[0] = (11, 12)
    rd = {}
    if QK:
        for j, g in enumerate((2, 3, 11, 12)): rd[g] = qr(i, 1, j)
    if QK and i + 1 < NB:
        for j, g in enumerate((114, 115, 122, 123)): rd[g] = qr(i+1, 0, j)
    if PV:
        slots = [17, 22, 23, 25, 30, 31, 38, 39, 46, 47, 54, 55, 62, 63, 70, 71, 78, 79, 90, 91, 98, 99, 106, 107]
        for n, g in enumerate(slots): rd[g] = pr(i-1, n // 4, n % 4)
        rd[130] = lr(i-1, 0); rd[131] = lr(i-1, 1)
    if PV:
        put(15, wait_both("all", [("w", ("Q", (i+1) & 3, 0)), ("w", ("Q", (i+1) & 3, 1))] if (QK and i+1 < NB) else None))
        put(16, barrier())
        for m, g in enumerate((37, 53, 75, 89, 105, 121)): put(g, wait_lgkm(sum((R("v", vPs[m % 3][c], 4) for c in range(4)), [])))
    elif QK:
        put(15, wait_both("all", [("w", ("Q", (i+1) & 3, 0)), ("w", ("Q", (i+1) & 3, 1))]))
        put(16, barrier())
    if QK:
        put(66, wait_lgkm(sum((R("v", vQ[1][j], 4) for j in range(4)), [])))
        if i + 1 < NB: put(135, wait_lgkm(sum((R("v", vQ[0][j], 4) for j in range(4)), [])))
    if EP:
        put(1, wait_lgkm(R("v", vLd[0], 4) + R("v", vLd[1], 4)))
        put(18, so_next(i-2, 0)); put(19, so_next(i-2, 1))
    if DMA:
        a, b, c = q_next(i+4)
        put(26, a); put(27, b); put(28, c); put(29, m0set(i+4, 0))
        put(32, qdma(i+4, 0)); put(34, m0set(i+4, 1)); put(41, qdma(i+4, 1))
    for g, x in rd.items(): put(g, x)
    if PV:
        put(0, ex(i-1, 15, 2)); put(1, ex(i-1, 15, 3)); put(2, cv(i-1, 15, 0)); put(3, cv(i-1, 15, 1)); put(4, pw(i-1, 3, 1))
        put(10, lw(i-1))
    if QK:
        for T in range(16):
            for r in range(4):
                if Rr[T] + r < 136: put(Rr[T]+r, ex(i, T, r))
            if T < 15:
                put(cg[T][0], cv(i, T, 0)); put(cg[T][1], cv(i, T, 1))
                if T % 2: put(cg[T][1]+1, pw(i, (T % 8)//2, T//8))
    if EP:
        e = i - 2
        put(5, ladd(e, 0, 0), ladd(e, 0, 1)); put(13, ladd(e, 1, 0), ladd(e, 1, 1)); put(14, ladd(e, 0, 2), ladd(e, 1, 2))
        put(15, rcp(e, 0)); put(16, rcp(e, 1)); put(17, chk(e, True)); put(25, chk(e, False))
        put(33, omul(e,0,0,0), omul(e,0,0,1)); put(48, omul(e,0,0,2), omul(e,0,0,3)); put(49, omul(e,0,1,0), omul(e,0,1,1))
        put(57, omul(e,0,1,2), omul(e,0,1,3)); put(64, ocv(e,0,0,0), ocv(e,0,0,1)); put(65, ocv(e,0,1,0), ocv(e,0,1,1))
        put(73, ost(e, 0))
        put(80, omul(e,1,0,0), omul(e,1,0,1)); put(81, omul(e,1,0,2), omul(e,1,0,3)); put(82, omul(e,1,1,0), omul(e,1,1,1))
        put(83, omul(e,1,1,2), omul(e,1,1,3)); put(84, ocv(e,1,0,0), ocv(e,1,0,1)); put(85, ocv(e,1,1,0), ocv(e,1,1,1))
        put(93, ost(e, 1))
    if QK and (i & 1) and i + 1 < NB: put(100, qtoggle(i+1))
    out = []
    for n in range(136):
        if M[n] is not None: out.append(M[n])
        out += G[n]
    return out

def setup():
    o = []
    A = lambda t, rd=(), wr=(), prod=None: o.append(valu(t, rd, wr, prod=prod) if t.startswith("v_") else salu(t, rd, wr))
    A("s_load_dwordx4 s[4:7], s[0:1], 0"); A("s_load_dwordx4 s[24:27], s[0:1], 16")
    A(f"v_lshrrev_b32 v{vT[0]}, 6, v0", ["v0"], [f"v{vT[0]}"])
    A(f"v_and_b32 v0, 63, v0", ["v0"], ["v0"])
    A(f"v_readfirstlane_b32 s{sW}, v{vT[0]}", [f"v{vT[0]}"], [f"s{sW}"])
    A(f"v_lshlrev_b32 v{vL16}, 4, v0", ["v0"], [f"v{vL16}"])
    A(f"v_and_b32 v{vT[1]}, 15, v0", ["v0"], [f"v{vT[1]}"])
    A(f"v_lshrrev_b32 v{vT[2]}, 4, v0", ["v0"], [f"v{vT[2]}"])
    A(f"s_mul_i32 s{sT}, s2, 0x5c000"); A(f"s_lshl_b32 s{sT2}, s2, 17")
    A(f"s_mov_b32 s{sQ+2}, 0x5c000"); A(f"s_mov_b32 s{sQ+3}, 0x20000"); A(f"s_mov_b32 s{sK+2}, 0x20000"); A(f"s_mov_b32 s{sK+3}, 0x20000")
    A(f"s_mov_b32 s{sV+2}, 0x20000"); A(f"s_mov_b32 s{sV+3}, 0x20000"); A(f"s_mov_b32 s{sO+2}, 0x5c000"); A(f"s_mov_b32 s{sO+3}, 0x20000")
    o.append(raw("s_waitcnt lgkmcnt(0)"))
    A(f"s_add_u32 s{sK}, s6, s{sT2}"); A(f"s_addc_u32 s{sK+1}, s7, 0")
    A(f"s_add_u32 s{sQ}, s4, s{sT}"); A(f"s_addc_u32 s{sQ+1}, s5, 0")
    A(f"s_add_u32 s{sV}, s24, s{sT2}"); A(f"s_addc_u32 s{sV+1}, s25, 0")
    A(f"s_add_u32 s{sO}, s26, s{sT}"); A(f"s_addc_u32 s{sO+1}, s27, 0")
    return o
class Cfg:
    D = 12
    LAT = 1.35
    DT = 0.137
    F = 1.6e3
    EARLY = 0.0
    KM = 0.0
    units = [(b, c) for c in range(4) for b in range(NS)]
    loads = "Q0 K0.0 V0.0 K0.1-7 Q1 V0.1-7 Q2 Q3 Q4 Q5 Q6 Q7 K1 V1 K2 V2 K3 V3 Q8 Q9 Q10 Q11"
def S_(t, rd=(), wr=(), exp=None, prod=None):
    x = salu(t, rd, wr); x.exp = exp or {}; x.prod = prod or {}; return x
def qk2(b, c, x, j):
    u, t = x // 2, 2*c + x % 2
    return mfma(vS[x], ("a", aK(t, j)), vQ[u][j], c=(j > 0), ta=("K", t, j), tb=("Q", b, u, j), tc=("S", (b, c), x, j-1), td=("S", (b, c), x, j))
def ex2(b, c, x, r): return ex((b, c), x, r, S=vS[x])
def cv2(b, c, x, h):
    S = vS[x]; u = x // 2; d = vP2[u] + 2*(x % 2) + h
    a, e = f"v{S+2*h}", f"v{S+2*h+1}"
    return valu(f"v_cvt_pk_bf16_f32 v{d}, {a}, {e}", [a, e], [f"v{d}"],
                exp={a: (("E", (b, c), x), 2*h), e: (("E", (b, c), x), 2*h+1)}, prod={f"v{d}": (("P2", b, c, 0, u), 2*(x % 2)+h)})
def pw2(n, b, c, u):
    d = vP2[u]
    return I("dsw", f"ds_write_b128 v{vPw}, {rng('v', d, 4)} offset:{32768 + ((n & 1)*2+u)*1024}", rd=[f"v{vPw}"] + R("v", d, 4),
             exp=tagmap(R("v", d, 4), ("P2", b, c, 0, u)), ldsw=[(("X", n & 1, u), ("X", n))])
def pr2(n, b, c, k, u):
    d = vP3[k-1][u]
    return I("dsr", f"ds_read_b128 {rng('v', d, 4)}, v{vPr[k-1]} offset:{32768 + ((n & 1)*2+u)*1024}", rd=[f"v{vPr[k-1]}"], wr=R("v", d, 4),
             prod=tagmap(R("v", d, 4), ("P2", b, c, k, u)), ldsr=[(("X", n & 1, u), ("X", n))])
def qr2(b, u, j):
    d = vQ[u][j]; sl = b if b < NS else b & 3
    return I("dsr", f"ds_read_b128 {rng('v', d, 4)}, v{vQrd} offset:{sl*8192 + (u*4+j)*1024}", rd=[f"v{vQrd}"], wr=R("v", d, 4),
             exp={f"v{vQrd}": ("qrd", 0)}, prod=tagmap(R("v", d, 4), ("Q", b, u, j)), ldsr=[(("Q", sl, (u*4+j) & 1), ("Q", b))])
def pv2(b, c, m, k, u, dt):
    n = 4*m + k
    return mfma(O2[b][u][dt], ("a", aV(k, c, dt)), vP2[u] if k == 0 else vP3[k-1][u], c=(n > 0), ta=("V", k, c, dt), tb=("P2", b, c, k, u),
                tc=("O", b, u, dt, n-1), td=("O", b, u, dt, n))
def ones2(b, c, m, u):
    x = mfma(vLa[u], ("v", vOnes), vP2[u], c=(m > 0), ta="ones", tb=("P2", b, c, 0, u), td=("L2", b, m, u))
    if m: x.exp[f"v{vLa[u]}"] = (("L2", b, m-1, u), 0)
    return x
def lacc2(b, m):
    return I("dsw", f"ds_write2st64_b32 v{vLw}, v{vLa[0]}, v{vLa[1]} offset0:{2*b} offset1:{2*b+1}", rd=[f"v{vLw}", f"v{vLa[0]}", f"v{vLa[1]}"],
             exp={f"v{vLa[u]}": (("L2", b, m, u), 0) for u in range(2)}, ldsw=[(("L2", b, u), ("L2", b, m)) for u in range(2)])
def lrd2(b, m, u):
    return I("dsr", f"ds_read_b32 v{vLa[u]}, v{vLw} offset:{b*512 + u*256}", rd=[f"v{vLw}"], wr=[f"v{vLa[u]}"],
             prod={f"v{vLa[u]}": (("L2", b, m, u), 0)}, ldsr=[(("L2", b, u), ("L2", b, m), "own")])
def lr2(b, u):
    d = vLd[u]
    return I("dsr", f"ds_read_b128 {rng('v', d, 4)}, v{vLr} offset:{b*512 + u*256}", rd=[f"v{vLr}"], wr=R("v", d, 4),
             prod=tagmap(R("v", d, 4), ("LP", b, u)), ldsr=[(("L2", b, u), ("L2", b, 3))])
def ep2(b):
    o = [wait_lgkm(R("v", vLd[0], 8)), ladd(b,0,0), ladd(b,0,1), ladd(b,1,0), ladd(b,1,1), ladd(b,0,2), ladd(b,1,2), rcp(b,0), rcp(b,1),
         S_(f"s_mov_b32 s{sO0}, {b*0x2000:#x}", [], [f"s{sO0}"], prod={f"s{sO0}": ("so", b, 0)}), S_(f"s_mov_b32 s{sO1}, {b*0x2000+0x1000:#x}", [], [f"s{sO1}"], prod={f"s{sO1}": ("so", b, 1)}),
         chk(b, True), chk(b, False)]
    for u in range(2):
        for dt in range(2):
            for r in range(4):
                v = f"v{O2[b][u][dt] + r}"
                o.append(valu(f"v_mul_f32 {v}, {v}, v{vRc[u]}", [v, f"v{vRc[u]}"], [v], exp={v: (("O", b, u, dt, 15), r), f"v{vRc[u]}": ("RC", b, u)}, prod={v: (("N", b, u, dt), r)}))
        D = O2[b][u][0]
        for dt in range(2):
            for h in range(2):
                s = O2[b][u][dt] + 2*h; d = D + 2*dt + h
                o.append(valu(f"v_cvt_pk_bf16_f32 v{d}, v{s}, v{s+1}", R("v", s, 2), [f"v{d}"],
                              exp={f"v{s}": (("N", b, u, dt), 2*h), f"v{s+1}": (("N", b, u, dt), 2*h+1)}, prod={f"v{d}": (("OUT", b, u), 2*dt+h)}))
        so = sO0 if u == 0 else sO1
        o.append(I("vmem", f"buffer_store_dwordx4 {rng('v', D, 4)}, v{vO}, s[{sO}:{sO+3}], s{so} offen{STFLAG}",
                   rd=R("v", D, 4) + [f"v{vO}", f"s{so}"], exp={**tagmap(R("v", D, 4), ("OUT", b, u)), f"s{so}": ("so", b, u)}))
    return o
def prescale(t, j, pk):
    tmp = vLd[0]; o = []; regs = R("a", aK(t, j), 4); V = lambda r: f"v{tmp+r}"
    for r in range(4): o.append(valu(f"v_accvgpr_read_b32 {V(2*r+1)}, {regs[r]}", [regs[r]], [V(2*r+1)], exp={regs[r]: (("Kraw", t, j), r)}))
    for r in range(4): o.append(valu(f"v_lshlrev_b32 {V(2*r)}, 16, {V(2*r+1)}", [V(2*r+1)], [V(2*r)]))
    for r in range(4): o.append(valu(f"v_and_b32 {V(2*r+1)}, s{sMask}, {V(2*r+1)}", [V(2*r+1)], [V(2*r+1)]))
    if pk:
        for r in range(4): o.append(valu(f"v_pk_mul_f32 {rng('v', tmp+2*r, 2)}, {rng('v', tmp+2*r, 2)}, s[{sC2}:{sC2+1}]", [V(2*r), V(2*r+1)], [V(2*r), V(2*r+1)]))
    else:
        for r in range(8): o.append(valu(f"v_mul_f32 {V(r)}, s{sC2}, {V(r)}", [V(r)], [V(r)]))
    for r in range(4): o.append(valu(f"v_cvt_pk_bf16_f32 {V(2*r)}, {V(2*r)}, {V(2*r+1)}", [V(2*r), V(2*r+1)], [V(2*r)]))
    for r in range(4): o.append(valu(f"v_accvgpr_write_b32 {regs[r]}, {V(2*r)}", [V(2*r)], [regs[r]], prod={regs[r]: (("K", t, j), r)}))
    return o
vCH, vCL = vPoAlt, vPoAlt + 2
def bf16(x):
    u = f32(x); return (u + 0x7fff + ((u >> 16) & 1)) >> 16
def unbf(h): return struct.unpack("<f", struct.pack("<I", h << 16))[0]
_c = math.log2(math.e) / math.sqrt(128.0); CH = bf16(_c); CL = bf16(_c - unbf(CH))
def psm(t, j, h, e):
    d = vLd[e]; D = R("v", d, 4); a = aK(t, j) + 2*h; B = R("a", a, 2); tg = ("ps", t, j, h)
    eb = {B[r]: (("Kraw", t, j), 2*h + r) for r in range(2)}
    m = [I("mfma", f"v_mfma_f32_16x16x16_bf16 {rng('v', d, 4)}, {rng('v', vCH, 2)}, {rng('a', a, 2)}, 0", rd=R("v", vCH, 2) + B, wr=D, exp={**eb, **tagmap(R("v", vCH, 2), "ch")}, prod=tagmap(D, (tg, 0))),
         I("mfma", f"v_mfma_f32_16x16x16_bf16 {rng('v', d, 4)}, {rng('v', vCL, 2)}, {rng('a', a, 2)}, {rng('v', d, 4)}", rd=R("v", vCL, 2) + B + D, wr=D, c=D,
           exp={**eb, **tagmap(R("v", vCL, 2), "cl"), **tagmap(D, (tg, 0))}, prod=tagmap(D, (tg, 1)))]
    v = [valu(f"v_cvt_pk_bf16_f32 {D[2*r]}, {D[2*r]}, {D[2*r+1]}", D[2*r:2*r+2], [D[2*r]], exp={D[2*r]: ((tg, 1), 2*r), D[2*r+1]: ((tg, 1), 2*r+1)}, prod={D[2*r]: (tg, 2, r)}) for r in range(2)]
    v += [valu(f"v_accvgpr_write_b32 {B[r]}, {D[2*r]}", [D[2*r]], [B[r]], exp={D[2*r]: (tg, 2, r)}, prod={B[r]: (("K", t, j), 2*h + r)}) for r in range(2)]
    return m, v
def vtr(c, k):
    o = [S_(f"s_add_u32 s{sT}, s{sVl}, {k*8192}", [f"s{sVl}"], [f"s{sT}"]), S_(f"s_and_b32 s{sT}, s{sT}, 0x7fff", [f"s{sT}"], [f"s{sT}"]),
         S_(f"s_add_u32 s{sT}, s{sT}, {VS[c & 1]}", [f"s{sT}"], [f"s{sT}"]),
         valu(f"v_add_u32 v{vVa}, s{sT}, v{vVt}", [f"v{vVt}", f"s{sT}"], [f"v{vVa}"], prod={f"v{vVa}": ("va", c, k)})]
    rds = []
    for dt in range(2):
        for h in range(2):
            d = aV(k, c, dt) + 2*h
            rds.append(I("dsr", f"ds_read_b64_tr_b16 a[{d}:{d+1}], v{vVa} offset:{h*4096 + 8*dt}", rd=[f"v{vVa}"], wr=R("a", d, 2), exp={f"v{vVa}": ("va", c, k)},
                         prod={f"a{d}": (("V", k, c, dt), 2*h), f"a{d+1}": (("V", k, c, dt), 2*h+1)}, ldsr=[(("V", c & 1, n), ("V", c)) for n in range(8)]))
    return o, rds

COST = {"valu": 4, "trans": 8, "dsr": 4, "dsw": 10, "vmem": 8, "salu": 2, "wait": 1, "bar": 8, "nop": 2, "raw": 2, "label": 0}
class Start:
    def __init__(s, cfg):
        s.c = cfg; s.o = []; s.t = 0.0; s.tm = -1e9
        s.L = []
        for w in cfg.loads.split():
            w, _, sub = w.partition(".")
            n = int(w[1:])
            if w[0] == "Q": g = [("Q", n, h) for h in range(2)]
            if w[0] == "K": g = [("K", 2*n + x // 4, x % 4) for x in range(8)]
            if w[0] == "V": g = [("V", n, x) for x in range(8)]
            if sub:
                a, _, b = sub.partition("-"); g = g[int(a):int(b or a)+1]
            s.L += g
        s.idx = {l: i for i, l in enumerate(s.L)}
        s.ni = 0; s.C = []; s.m0 = None; s.ok = set(["Q%d" % b for b in range(NS)] + ["V0", "V1"])
        s.log = []
    def add(s, *ins):
        for x in ins:
            s.o.append(x)
            if x.kind == "mfma":
                s.t = max(s.t + 4, s.tm + 16); s.tm = s.t; s.t += 4
            elif x.kind == "dsw": s.t += 20 if "b128" in x.text else 12
            else: s.t += COST[x.kind]
    def us(s): return s.t / s.c.F
    def allowed(s):
        if s.ni >= len(s.L): return False
        l = s.L[s.ni]
        return l[0] == "K" or f"{l[0]}{l[1]}" in s.ok
    def free_at(s): return s.C[s.ni - s.c.D] if s.ni >= s.c.D else 0.0
    def issue(s):
        l = s.L[s.ni]; o = []
        if l[0] == "Q":
            _, b, h = l; sl = b if b < NS else b & 3
            o.append(S_(f"s_add_u32 m0, s{sM0}, {sl*8192 + 960*h}", [f"s{sM0}"], ["m0"], prod={"m0": ("m0q", b, h)}))
            o.append(S_(f"s_mov_b32 s{sQoff}, {b*0x2000:#x}", [], [f"s{sQoff}"], prod={f"s{sQoff}": ("qoff", b)}))
            o.append(I("vmem", f"buffer_load_dwordx4 v{vQd}, s[{sQ}:{sQ+3}], s{sQoff} offen{' offset:64' if h else ''}{QFLAG} lds",
                       rd=[f"v{vQd}", f"s{sQoff}", "m0"], exp={"m0": ("m0q", b, h), f"s{sQoff}": ("qoff", b)}, ldsw=[(("Q", sl, h), ("Q", b))]))
            s.m0 = None
        elif l[0] == "K":
            _, t, j = l
            if j == 0 and t > 0: o.append(S_(f"s_add_u32 s{sKoff}, s{sKoff}, 0x1000", [f"s{sKoff}"], [f"s{sKoff}"], exp={f"s{sKoff}": ("koff", t-1)}, prod={f"s{sKoff}": ("koff", t)}))
            o.append(I("vmem", f"buffer_load_dwordx4 {rng('a', aK(t, j), 4)}, v{vO}, s[{sK}:{sK+3}], s{sKoff} offen offset:{64*j}{KFLAG}",
                       rd=[f"v{vO}", f"s{sKoff}"], wr=R("a", aK(t, j), 4), exp={f"s{sKoff}": ("koff", t)}, prod=tagmap(R("a", aK(t, j), 4), ("Kraw", t, j))))
        else:
            _, c, n = l; grp = 2*c + n // 4
            if s.m0 != grp:
                o.append(S_(f"s_add_u32 m0, s{sVl}, {VS[c & 1] + (n // 4)*4096}", [f"s{sVl}"], ["m0"], prod={"m0": ("m0v", grp)})); s.m0 = grp
                o.append(S_(f"s_add_u32 s{sVoff}, s{sVoff}, 0x1000", [f"s{sVoff}"], [f"s{sVoff}"], exp={f"s{sVoff}": ("voff", grp-1)}, prod={f"s{sVoff}": ("voff", grp)}) if (n % 4 == 0 and grp > 0) else nop(0))
            o.append(I("vmem", f"buffer_load_dwordx4 v{vVd}, s[{sV}:{sV+3}], s{sVoff} offen offset:{1024*(n % 4)}{VFLAG} lds",
                       rd=[f"v{vVd}", f"s{sVoff}", "m0"], exp={"m0": ("m0v", grp), f"s{sVoff}": ("voff", grp)}, ldsw=[(("V", c & 1, n), ("V", c))]))
        s.t = max(s.t, s.free_at() * s.c.F)
        s.add(*o)
        s.C.append(max(s.us() + s.c.LAT, (s.C[-1] if s.C else 0) + s.c.DT))
        s.log.append((s.ni, l, round(s.us(), 2), round(s.C[-1], 2)))
        s.ni += 1
    def maybe_issue(s):
        if s.allowed() and s.free_at() <= s.us() + s.c.EARLY: s.issue()
    def topup(s, x):
        while s.allowed() and s.ni <= x + s.c.D: s.issue()
        assert s.ni > x, (x, s.L[x])
    def need(s, loads):
        if not loads: return None
        x = max(s.idx[l] for l in loads); s.topup(x)
        tg = []
        for l in loads:
            if l[0] == "Q": tg.append(("w", ("Q", l[1] if l[1] < NS else l[1] & 3, l[2])))
            elif l[0] == "V": tg.append(("w", ("V", l[1] & 1, l[2])))
            else: tg += R("a", aK(l[1], l[2]), 4)
        s.t = max(s.t, s.C[x] * s.c.F)
        return tg

def slots(x): return {"valu": 1, "trans": 2}.get(x.kind, 0)
def prologue(s, st):
    A = lambda t, rd=(), wr=(), prod=None: s.add(valu(t, rd, wr, prod=prod) if t.startswith("v_") else S_(t, rd, wr, prod=prod))
    s.add(*setup()); s.t += 0.3 * s.c.F
    q, g = f"v{vT[1]}", f"v{vT[2]}"
    t0, t3 = f"v{vT[0]}", f"v{vT[3]}"
    W = f"s{sW}"
    A(f"v_lshlrev_b32 {t0}, 8, {q}", [q], [t0])
    A(f"v_lshl_add_u32 {t0}, {g}, 4, {t0}", [g, t0], [t0])
    A(f"s_lshr_b32 s{sT}, {W}, 1", [W]); A(f"s_lshl_b32 s{sT}, s{sT}, 12"); A(f"s_and_b32 s{sT2}, {W}, 1", [W]); A(f"s_lshl_b32 s{sT2}, s{sT2}, 7")
    A(f"s_add_u32 s{sT}, s{sT}, s{sT2}")
    A(f"v_add_u32 v{vQd}, s{sT}, {t0}", [t0], [f"v{vQd}"])
    A(f"s_lshl_b32 s{sT}, {W}, 6", [W])
    A(f"v_add_u32 v{vO}, s{sT}, {t0}", [t0], [f"v{vO}"])
    A(f"s_lshl_b32 s{sVoff}, {W}, 15", [W], [f"s{sVoff}"], prod={f"s{sVoff}": ("voff", 0)})
    A(f"s_sub_u32 s{sKoff}, s{sVoff}, s{sT}", [], [f"s{sKoff}"], prod={f"s{sKoff}": ("koff", 0)})
    A(f"s_mov_b32 s{sQoff}, 0", [], [f"s{sQoff}"], prod={f"s{sQoff}": ("qoff", 0)})
    A(f"s_lshl_b32 s{sM0}, {W}, 11", [W], [f"s{sM0}"]); A(f"s_lshl_b32 s{sVl}, {W}, 13", [W], [f"s{sVl}"])
    if s.c.codepf:
        cp = vPs[0][0]
        A("s_getpc_b64 s[38:39]", [], ["s38", "s39"]); A(f"s_lshr_b32 s{sT}, s2, 3"); A(f"s_lshl_b32 s{sT}, s{sT}, 2"); A(f"s_add_u32 s{sT}, s{sT}, {W}")
        A(f"s_min_u32 s{sT}, s{sT}, {s.c.codepf - 1}"); A(f"s_lshl_b32 s{sT}, s{sT}, 10"); A(f"s_add_u32 s38, s38, s{sT}"); A("s_addc_u32 s39, s39, 0")
        A(f"v_add_co_u32 v{cp}, vcc, s38, v{vL16}", [f"v{vL16}"], [f"v{cp}", "vcc"]); A(f"v_mov_b32 v{cp+1}, s39", [], [f"v{cp+1}"])
        s.add(nop(1)); A(f"v_addc_co_u32 v{cp+1}, vcc, 0, v{cp+1}, vcc", [f"v{cp+1}", "vcc"], [f"v{cp+1}", "vcc"])
        s.add(I("vmem", f"global_load_dwordx4 {rng('v', cp+4, 4)}, {rng('v', cp, 2)}, off", rd=R("v", cp, 2), wr=R("v", cp+4, 4)))
    while s.L[s.ni][0] != "V" and s.ni < s.c.D: s.issue()
    vd = f"v{vVd}"
    A(f"v_lshlrev_b32 {vd}, 2, {g}", [g], [vd]); A(f"v_xor_b32 {vd}, {q}, {vd}", [q, vd], [vd]); A(f"v_lshlrev_b32 {vd}, 4, {vd}", [vd], [vd])
    A(f"v_lshl_add_u32 {vd}, {g}, 8, {vd}", [g, vd], [vd])
    while s.ni < s.c.D: s.issue()
    A(f"v_mov_b32 v{vQrd}, v{vL16}", [f"v{vL16}"], [f"v{vQrd}"], prod={f"v{vQrd}": ("qrd", 0)})
    A(f"s_add_u32 s{sT2}, s{sVl}, {PB}")
    A(f"v_add_u32 v{vPw}, s{sT2}, v{vL16}", [f"v{vL16}"], [f"v{vPw}"])
    for k in range(3):
        A(f"s_add_u32 s{sT}, s{sVl}, {(k+1)*8192}"); A(f"s_and_b32 s{sT}, s{sT}, 0x7fff"); A(f"s_add_u32 s{sT2}, s{sT}, {PB}")
        A(f"v_add_u32 v{vPr[k]}, s{sT2}, v{vL16}", [f"v{vL16}"], [f"v{vPr[k]}"])
    lr_, lw_ = f"v{vLr}", f"v{vLw}"
    A(f"v_lshlrev_b32 {lr_}, 13, {g}", [g], [lr_]); A(f"v_lshl_add_u32 {lr_}, {q}, 4, {lr_}", [q, lr_], [lr_]); A(f"v_add_u32 {lr_}, {L2B}, {lr_}", [lr_], [lr_])
    A(f"v_add_u32 {lw_}, {W}, {g}", [g, W], [lw_]); A(f"v_and_b32 {lw_}, 3, {lw_}", [lw_], [lw_]); A(f"v_lshl_add_u32 {lw_}, {lw_}, 2, {lr_}", [lw_, lr_], [lw_])
    for r in range(4): A(f"v_mov_b32 v{vOnes+r}, 0x3f803f80", [], [f"v{vOnes+r}"], prod={f"v{vOnes+r}": ("ones", r)})
    A(f"v_mov_b32 v{vMax}, 1.0", [], [f"v{vMax}"]); A(f"v_mov_b32 v{vMin}, 1.0", [], [f"v{vMin}"])
    A(f"s_mov_b32 s{sO0}, {(-0x2000) & 0xffffffff:#x}", [], [f"s{sO0}"], prod={f"s{sO0}": ("so", -1, 0)})
    A(f"s_mov_b32 s{sO1}, {(-0x1000) & 0xffffffff:#x}", [], [f"s{sO1}"], prod={f"s{sO1}": ("so", -1, 1)})
    A(f"s_mov_b32 s{sC2}, {CSC:#x}"); A(f"s_mov_b32 s{sC2+1}, {CSC:#x}"); A(f"s_mov_b32 s{sMask}, 0xffff0000")
    A(f"s_add_u32 s{sM}, s{sM0}, {3*8192}", [], [f"s{sM}"], prod={f"s{sM}": ("sM", 3)})
    x1, x2 = f"v{vVt}", t3
    A(f"v_lshrrev_b32 {x1}, 2, v0", ["v0"], [x1])
    A(f"v_and_b32 {x2}, 3, {x1}", [x1], [x2]); A(f"v_xor_b32 {x2}, {W}, {x2}", [x2, W], [x2]); A(f"v_lshlrev_b32 {x2}, 6, {x2}", [x2], [x2])
    A(f"v_lshl_add_u32 {x1}, {x1}, 8, {x2}", [x1, x2], [x1])
    A(f"v_and_b32 {x2}, 3, v0", ["v0"], [x2]); A(f"v_lshl_add_u32 {x1}, {x2}, 4, {x1}", [x1, x2], [x1])
    A(f"v_lshrrev_b32 {t0}, 2, {q}", [q], [t0]); A(f"v_cmp_eq_u32 vcc, {t0}, {g}", [t0, g], ["vcc"])
    A(f"v_and_b32 {t0}, 1, {q}", [q], [t0]); A(f"v_lshlrev_b32 {t0}, 4, {t0}", [t0], [t0])
    A(f"s_mov_b32 s{sT}, {CH:#x}"); A(f"s_mov_b32 s{sT2}, {CL:#x}")
    A(f"v_lshlrev_b32 {t3}, {t0}, s{sT}", [t0], [t3]); A(f"v_lshlrev_b32 {t0}, {t0}, s{sT2}", [t0], [t0])
    A(f"v_cndmask_b32 {t3}, 0, {t3}, vcc", [t3, "vcc"], [t3]); A(f"v_cndmask_b32 {t0}, 0, {t0}, vcc", [t0, "vcc"], [t0])
    A(f"v_and_b32 {g}, 2, {q}", [q], [g]); A(f"v_cmp_eq_u32 vcc, 0, {g}", [g], ["vcc"])
    s.add(nop(1))
    A(f"v_cndmask_b32 v{vCH}, 0, {t3}, vcc", [t3, "vcc"], [f"v{vCH}"], prod={f"v{vCH}": ("ch", 0)}); A(f"v_cndmask_b32 v{vCH+1}, {t3}, 0, vcc", [t3, "vcc"], [f"v{vCH+1}"], prod={f"v{vCH+1}": ("ch", 1)})
    A(f"v_cndmask_b32 v{vCL}, 0, {t0}, vcc", [t0, "vcc"], [f"v{vCL}"], prod={f"v{vCL}": ("cl", 0)}); A(f"v_cndmask_b32 v{vCL+1}, {t0}, 0, vcc", [t0, "vcc"], [f"v{vCL+1}"], prod={f"v{vCL+1}": ("cl", 1)})
    b0, c0 = s.c.units[0]
    s.add(wait_vm(s.need([("Q", b0, h) for h in range(2)])), barrier())
    for u in range(2):
        for j in range(4): s.add(qr2(b0, u, j))
    for x in range(8):
        l = ("K", 2*c0 + x // 4, x % 4)
        s.add(wait_vm(s.need([l]))); s.add(*prescale(l[1], l[2], True))

def startup(cfg, st):
    s = Start(cfg); U = cfg.units; NU = len(U)
    s.add(*st(0)); prologue(s, st)
    cnt = {}; m_of = []
    for (b, c) in U: m_of.append(cnt.get(b, 0)); cnt[b] = cnt.get(b, 0) + 1
    firstK = {}; lastQ = {}
    for n, (b, c) in enumerate(U): firstK.setdefault(c, n); lastQ[b] = n
    vun = {c: firstK[c] + 1 - cfg.vearly.get(c, 0) for c in firstK}
    seenQ = {U[0][0]}
    pend = [(firstK[c], 2*c + x // 8, (x // 2) % 4, x % 2) for c in sorted(firstK, key=firstK.get) if firstK[c] > 0 for x in range(16)]
    ps = dict(e=0, v=[], got=set())
    def ps_pair():
        dl, t, j, h = pend.pop(0)
        if (t, j) not in ps["got"]: s.add(wait_vm(s.need([("K", t, j)]))); ps["got"].add((t, j))
        m, v = psm(t, j, h, ps["e"]); ps["e"] ^= 1
        s.add(m[0], *ps["v"][:2]); s.add(m[1], *ps["v"][2:]); ps["v"] = v
    carry = []
    marks = cfg.marks
    s.add(wait_lgkm("all"))
    for n, (b, c) in enumerate(U):
        nb = U[n+1][0] if n + 1 < NU else NS
        M = [qk2(b, c, x, j) for x in range(2) for j in range(4)]
        G = [[] for _ in range(34)]
        if n:
            pb, pc = U[n-1]; pm = m_of[n-1]
            P = [[pv2(pb, pc, pm, k, u, dt) for u in range(2) for dt in range(2)] for k in range(4)]
            M += [ones2(pb, pc, pm, 0), ones2(pb, pc, pm, 1)]
        else: P = [[None]*4]*4; M += [None]*2; pb = None
        M += P[0] + [qk2(b, c, 2, j) for j in range(4)] + P[1] + [qk2(b, c, 3, j) for j in range(4)] + P[2] + P[3]
        vc = [x for x in vun if vun[x] == n]; late = bool(vc) and n and vc[0] == pc
        bg = 3 if late else 5
        ld = []; ld2 = []
        if nb not in seenQ: (ld2 if n in cfg.lateq else ld).extend(("Q", nb, h) for h in range(2)); seenQ.add(nb)
        for x in vc: ld += [("V", x, y) for y in range(8)]
        if n:
            if pb != b:
                for j in range(4): G[j // 2].append(qr2(b, 1, j))
                G[13].append(wait_lgkm(sum((R("v", vQ[1][j], 4) for j in range(4)), [])))
            if pm and not (n >= 2 and U[n-2][0] == pb):
                G[2] += [lrd2(pb, pm-1, 0), lrd2(pb, pm-1, 1)]; G[7].append(wait_lgkm([f"v{vLa[0]}", f"v{vLa[1]}"]))
            if pb != b: G[27].append(lacc2(pb, pm))
        G[bg].append(("bar", ld, [("w", ("X", (n-1) & 1, u)) for u in range(2)] + [("r", ("X", n & 1, u)) for u in range(2)]))
        vt = {}
        for x in vc:
            for k in range(4): vt[k] = vtr(x, k)
        if late:
            G[3] += vt[0][0] + vt[0][1][:2]; G[4] += vt[0][1][2:]
            for k in (1, 2, 3):
                for y in range(4): G[2 + 4*k + y] += (vt[k][0] if y == 0 else []) + [vt[k][1][y]]
        elif vc:
            for k in range(4):
                for y in range(4): G[6 + 4*k + y] += (vt[k][0] if y == 0 else []) + [vt[k][1][y]]
        if n:
            for k, g in ((1, 5), (2, 18), (3, 19)): G[g] += [pr2(n-1, pb, pc, k, 0), pr2(n-1, pb, pc, k, 1)]
            for k, g in ((0, 9), (1, 17), (2, 25), (3, 29)):
                tg = (sum((R("v", vP3[k-1][u], 4) for u in range(2)), []) if k else []) + (sum((R("a", aV(k, pc, dt), 4) for dt in range(2)), []) if vun[pc] >= n - 1 else [])
                if tg: G[g].insert(0, wait_lgkm(tg))
        for x, (ge, gc) in enumerate(((6, 14), (10, 15), (20, 24), (28, 32))):
            for r in range(4): G[ge+r].append(ex2(b, c, x, r))
            G[gc] += [cv2(b, c, x, 0), cv2(b, c, x, 1)]
        G[16].append(pw2(n, b, c, 0)); G[33].append(pw2(n, b, c, 1))
        if ld2: G[24].append(("bar", ld2, None))
        if nb != b:
            for j in range(4): G[25 + j // 2].append(qr2(nb, 0, j))
            G[33].insert(0, wait_lgkm(sum((R("v", vQ[0][j], 4) for j in range(4)), [])))
        for x, op in enumerate(carry): G[x * 12 // len(carry)].append(op)
        carry = []
        if n >= 2 and m_of[n-2] == 3:
            eb = U[n-2][0]
            G[bg] += [lr2(eb, 0), lr2(eb, 1)]
            e = ep2(eb); cut = cfg.epcut
            for x, op in enumerate(e[:cut]): G[12 + x * 22 // cut].append(op)
            carry = e[cut:]
        for g in range(34):
            if g == 0:
                while pend and pend[0][0] <= n: ps_pair()
                if ps["v"] and not (pend and pend[0][0] > n and firstK.get(c) != n): s.add(*ps["v"]); ps["v"] = []
                if n in marks: s.add(*st(marks[n]))
            if M[g] is not None: s.add(M[g])
            for x in G[g]:
                if isinstance(x, tuple):
                    s.add(wait_both(x[2], s.need(x[1])), barrier())
                    if x[2] is not None:
                        for cc in vun:
                            if vun[cc] == n - 1: s.ok.add(f"V{cc + 2}")
                        if n and lastQ[pb] <= n - 1 and pb < 4: s.ok.add(f"Q{pb + NS}")
                else: s.add(x)
            if g in cfg.psgaps and pend:
                dl, t, j, h = pend[0]; i = s.idx[("K", t, j)]
                left = len([p for p in pend if p[0] == dl]); room = len([y for y in cfg.psgaps if y >= g]) + (dl - n - 1) * len(cfg.psgaps)
                if i < s.ni and (s.C[i] + cfg.KM <= s.us() or left > room): ps_pair()
            elif g in cfg.psgaps and ps["v"]: s.add(*ps["v"]); ps["v"] = []
            if not any((not isinstance(x, tuple)) and x.kind in ("vmem", "dsw") for x in G[g]): s.maybe_issue()
        if cfg.verbose: print(f"unit {n} {U[n]} ends {s.us():.2f} issued {s.ni} pend {len(pend)}")
    if NU in marks: s.add(*st(marks[NU]))
    return s, carry
Cfg.codepf = 0; Cfg.epcut = 26; Cfg.verbose = False; Cfg.vearly = {2: 1, 3: 1}; Cfg.lateq = {1}; Cfg.psgaps = (3, 9, 13, 17, 21, 25, 29, 33)
Cfg.marks = {0: 1, 1: 2, 8: 3, 9: 4, 16: 5, 17: 6, 24: 7, 25: 8, 32: 9}

def transition(cfg, s, carry):
    i = NS; U = cfg.units; n = len(U) - 1; pb, pc = U[n]; assert pb == NS - 1 and U[n-1][0] == NS - 2
    seq = cfg.trseq.split()
    M = []; pos = {}
    for w in seq:
        pos[w] = len(M)
        if w == "o": M += [ones(i, 0, c) for c in range(4)]
        elif w == "l": M += [ones2(pb, pc, 3, u) for u in range(2)]
        elif w[0] == "p": M += [pv2(pb, pc, 3, int(w[1]), u, dt) for u in range(2) for dt in range(2)]
        else: M += [qk(i, int(w), j) for j in range(4)]
    NG = len(M); G = [[] for _ in range(NG)]
    G[0] += [lrd2(pb, 2, 0), lrd2(pb, 2, 1)]
    for j in range(4): G[1 + j // 2].append(qr2(i, 1, j))
    G[5] += [wait_lgkm("all"), barrier(), lr2(NS-2, 0), lr2(NS-2, 1)]
    for k in (1, 2, 3): G[5 + k] += [pr2(n, pb, pc, k, 0), pr2(n, pb, pc, k, 1)]
    G[pos["l"] + 5].append(lacc2(pb, 3))
    b2 = pos["l"] + 14
    G[pos["p1"] - 1].insert(0, wait_lgkm(sum((R("v", vP3[k][u], 4) for k in range(3) for u in range(2)), [])))
    G[b2].append(wait_both("all", [("w", ("Q", (i+1) & 3, h)) for h in range(2)])); G[b2+1].append(barrier())
    rest = []
    while s.ni < len(s.L):
        k0 = len(s.o); s.ok.add(f"Q{s.L[s.ni][1]}"); s.issue(); rest.append(s.o[k0:]); del s.o[k0:]
    g = 10
    for x in rest: G[g] += x; g += 3
    g = max(g, b2 + 2)
    a, b, c = q_next(i+4)
    G[g].append(a); G[g+1].append(b); G[g+2].append(c); G[g+3].append(m0set(i+4, 0)); G[g+4].append(qdma(i+4, 0)); G[g+6].append(m0set(i+4, 1)); G[g+8].append(qdma(i+4, 1))
    gst = g + 9
    for j in range(4): G[pos["12"] + 2*j].append(qr(i+1, 0, j))
    G[NG-4].append(lr2(NS-1, 0)); G[NG-3].append(lr2(NS-1, 1))
    G[NG-1].append(wait_lgkm(sum((R("v", vQ[0][j], 4) for j in range(4)), [])))
    A = []
    for T in range(16):
        e = pos[str(T)] + 6; dl = pos[str(T+4)] - 1 if T + 4 < 16 else NG - 1
        if T < 8: dl = min(dl, pos["o"] - 2)
        for r in range(4 if T < 15 else 2): A.append((e, dl, ex(i, T, r)))
        if T < 15:
            A += [(e, dl, cv(i, T, 0)), (e, dl, cv(i, T, 1))]
            if T % 2:
                w = pw(i, (T % 8)//2, T//8)
                w.ldsw = w.ldsw + [(("Q", sl, h), "dead") for sl in range(4, 8) for h in range(2)]
                A.append((e, NG - 1, w))
    B = [(0, op) for op in carry] + [(12, op) for op in ep2(NS-2)]
    sl = lambda x: {"valu": 1, "trans": 2, "dsr": 1, "dsw": 5 if "b128" in (x.text or "") else 3, "vmem": 2}.get(x.kind, 0)
    tot = sum(sl(x[2]) for x in A) + sum(sl(x[1]) for x in B) + sum(sl(x) for y in G for x in y)
    rate = tot / NG * cfg.trrate; credit = 0.0
    out = []
    for g in range(NG):
        out.append(M[g]); out += G[g]
        credit = min(credit + rate - sum(sl(x) for x in G[g]), 5.0)
        while True:
            if A and A[0][0] <= g and (A[0][1] <= g or credit >= sl(A[0][2])): x = A.pop(0)[2]
            elif B and B[0][0] <= g and (credit >= sl(B[0][1]) or g == NG - 1) and not (B[0][1].kind == "vmem" and B[0][0] and g < gst): x = B.pop(0)[1]
            else: break
            out.append(x); credit -= sl(x)
    assert not A and not B
    return out
Cfg.trseq = "0 1 l p0 2 3 p1 4 5 6 7 8 o 9 10 p2 11 12 13 14 15 p3"; Cfg.trrate = 1.05

def slow_block(i):
    o = []
    S0 = 128
    assert vPs[0][0] >= 0
    Sx = lambda T: SL + 4*T
    o.append(barrier())
    o += [m0set(i, 0), nop(0), qdma(i, 0), m0set(i, 1), nop(0), qdma(i, 1), wait_vm("all"), barrier()]
    for u in range(2):
        for j in range(4): o.append(qr(i, u, j))
    o.append(wait_lgkm("all"))
    for T in range(16):
        for j in range(4): o.append(qk(i, T, j, S=Sx(T)))
    m = [vLs[0], vLs[1]]
    for u in range(2):
        regs = [Sx(8*u + t) + r for t in range(8) for r in range(4)]
        o.append(valu(f"v_max_f32 v{m[u]}, v{regs[0]}, v{regs[1]}", [f"v{regs[0]}", f"v{regs[1]}"], [f"v{m[u]}"]))
        for x in range(2, 32, 2):
            o.append(valu(f"v_max3_f32 v{m[u]}, v{m[u]}, v{regs[x]}, v{regs[x+1]}", [f"v{m[u]}", f"v{regs[x]}", f"v{regs[x+1]}"], [f"v{m[u]}"]))
    o.append(I("dsw", f"ds_write2_b32 v{vT[0]}, v{m[0]}, v{m[1]} offset0:0 offset1:16", rd=[f"v{vT[0]}", f"v{m[0]}", f"v{m[1]}"], ldsw=[("MX", ("MX", i))]))
    o += [wait_lgkm("all"), barrier()]
    X = vPs[0][0]
    for x in range(8):
        o.append(I("dsr", f"ds_read_b128 {rng('v', X+4*x, 4)}, v{vT[1]} offset:{16*x}", rd=[f"v{vT[1]}"], wr=R("v", X+4*x, 4), ldsr=[("MX", ("MX", i))]))
    o.append(wait_lgkm("all"))
    for u in range(2):
        regs = [X + 16*u + x for x in range(16)]
        o.append(valu(f"v_max_f32 v{m[u]}, v{regs[0]}, v{regs[1]}", [f"v{regs[0]}", f"v{regs[1]}"], [f"v{m[u]}"]))
        for x in range(2, 16, 2):
            o.append(valu(f"v_max3_f32 v{m[u]}, v{m[u]}, v{regs[x]}, v{regs[x+1]}", [f"v{m[u]}", f"v{regs[x]}", f"v{regs[x+1]}"], [f"v{m[u]}"]))
    for T in range(16):
        for r in range(4):
            v = f"v{Sx(T)+r}"
            o.append(valu(f"v_sub_f32 {v}, {v}, v{m[T//8]}", [v, f"v{m[T//8]}"], [v], exp={v: (("S", i, T, 3), r)}, prod={v: (("S", i, T, 3), r)}))
        for r in range(4): o.append(ex(i, T, r, S=Sx(T)))
        o.append(cv(i, T, 0, S=Sx(T))); o.append(cv(i, T, 1, S=Sx(T)))
        if T % 2: o.append(pw(i, (T % 8)//2, T//8))
    for u in range(2):
        for c in range(4): o.append(ones(i, u, c))
    o += [lw(i), wait_lgkm("all"), barrier(), lr(i, 0), lr(i, 1)]
    for u in range(2):
        for dt in range(2):
            for c in range(4): o.append(pv(i, 0, c, u, dt))
    for mm in range(6):
        for c in range(4): o.append(pr(i, mm, c))
        o.append(wait_lgkm("all"))
        for dt in range(2):
            for c in range(4): o.append(pv(i, mm//2 + 1, c, mm % 2, dt))
    for u in range(2):
        o += [ladd(i, u, 0), ladd(i, u, 1), ladd(i, u, 2), rcp(i, u), so_next(i, u)]
        for dt in range(2):
            for r in range(4): o.append(omul(i, u, dt, r))
            o += [ocv(i, u, dt, 0), ocv(i, u, dt, 1)]
        o.append(ost(i, u))
    a = salu(f"s_add_u32 s{sQoff}, s{sQoff}, 0x2000", [f"s{sQoff}"], [f"s{sQoff}", "scc"]); a.prod = {f"s{sQoff}": ("qoff", i+4)}
    o.append(a)
    return o
SL = 192
def slow_setup():
    o = []
    A = lambda t, rd=(), wr=(), prod=None: o.append(valu(t, rd, wr, prod=prod) if t.startswith("v_") else salu(t, rd, wr))
    W = f"s{sW}"
    o.append(wait_both("all", "all"))
    x = salu(f"s_mov_b32 s{sQoff}, 0", [], [f"s{sQoff}"]); x.prod = {f"s{sQoff}": ("qoff", 100)}; o.append(x)
    x = salu(f"s_lshl_b32 s{sM}, {W}, 11", [W], [f"s{sM}"]); x.prod = {f"s{sM}": ("sM", 0)}; o.append(x)
    A(f"v_mov_b32 v{vQrd}, v{vL16}", [f"v{vL16}"], [f"v{vQrd}"], prod={f"v{vQrd}": ("qrd", 0)})
    x = salu(f"s_mov_b32 s{sO0}, {(-0x2000) & 0xffffffff:#x}", [], [f"s{sO0}"]); x.prod = {f"s{sO0}": ("so", 99, 0)}; o.append(x)
    x = salu(f"s_mov_b32 s{sO1}, {(-0x1000) & 0xffffffff:#x}", [], [f"s{sO1}"]); x.prod = {f"s{sO1}": ("so", 99, 1)}; o.append(x)
    A(f"v_and_b32 v{vT[1]}, 15, v0", ["v0"], [f"v{vT[1]}"]); A(f"v_lshlrev_b32 v{vT[1]}, 7, v{vT[1]}", [f"v{vT[1]}"], [f"v{vT[1]}"])
    A(f"v_add_u32 v{vT[1]}, {MXB}, v{vT[1]}", [f"v{vT[1]}"], [f"v{vT[1]}"])
    A(f"v_lshrrev_b32 v{vT[0]}, 4, v0", ["v0"], [f"v{vT[0]}"]); A(f"s_lshl_b32 s{sT}, {W}, 2", [W])
    A(f"v_add_u32 v{vT[0]}, s{sT}, v{vT[0]}", [f"v{vT[0]}"], [f"v{vT[0]}"])
    A(f"v_lshl_add_u32 v{vT[0]}, v{vT[0]}, 2, v{vT[1]}", [f"v{vT[0]}", f"v{vT[1]}"], [f"v{vT[0]}"])
    A(f"s_mov_b32 s{sCnt}, {NB}")
    return o

def stamp(p):
    return [raw(f"s_memtime s[{40+2*p}:{41+2*p}]"), raw(f"s_memrealtime s[{70+2*p}:{71+2*p}]"), wait_lgkm("all")]
def stamp30(p): return [raw(f"s_memtime s[{40+2*p}:{41+2*p}]")]
def dump30():
    o = [raw("s_load_dwordx2 s[4:5], s[0:1], 40"), raw("s_waitcnt lgkmcnt(0)"), raw("s_mov_b32 s6, 0x1000000"), raw("s_mov_b32 s7, 0x20000"),
         raw(f"s_lshl_b32 s3, s2, 2"), raw(f"s_add_u32 s3, s3, s{sW}"), raw("s_lshl_b32 s3, s3, 8"), raw("v_mov_b32 v1, 0"), raw("s_mov_b64 exec, 1")]
    for p in range(30):
        o += [raw(f"v_mov_b32 v2, s{40+2*p}"), raw(f"v_mov_b32 v3, s{41+2*p}"), raw(f"buffer_store_dwordx2 v[2:3], v1, s[4:7], s3 offen offset:{8*p}"), raw("s_nop 1")]
    o += [raw("s_waitcnt vmcnt(0)"), raw("s_endpgm")]
    return o
def dump(np_):
    o = [raw("s_load_dwordx2 s[4:5], s[0:1], 40"), raw("s_waitcnt lgkmcnt(0)"), raw("s_mov_b32 s6, 0x1000000"), raw("s_mov_b32 s7, 0x20000"),
         raw(f"s_lshl_b32 s3, s2, 2"), raw(f"s_add_u32 s3, s3, s{sW}"), raw("s_lshl_b32 s3, s3, 8"), raw("v_mov_b32 v1, 0"), raw("s_mov_b64 exec, 1")]
    for p in range(np_):
        for (b, off) in ((40, 0), (70, 128)):
            o += [raw(f"v_mov_b32 v2, s{b+2*p}"), raw(f"v_mov_b32 v3, s{b+1+2*p}"), raw(f"buffer_store_dwordx2 v[2:3], v1, s[4:7], s3 offen offset:{off+8*p}"), raw("s_nop 1")]
    o += [raw("s_waitcnt vmcnt(0)"), raw("s_endpgm")]
    return o
def dump_dbg(np_):
    o = [raw("s_load_dwordx2 s[4:5], s[0:1], 32"), raw("s_waitcnt lgkmcnt(0)"), raw("s_mov_b32 s6, 64"), raw("s_mov_b32 s7, 0x20000"),
         raw("s_mov_b32 s3, 64"), raw("s_cmp_eq_u32 s2, 7"), raw("s_cselect_b32 s3, 0, s3"), raw("s_cmp_eq_u32 s2, 133"), raw("s_cselect_b32 s3, 32, s3"),
         raw(f"s_cmp_eq_u32 s{sW}, 0"), raw("s_cselect_b32 s3, s3, 64"), raw("v_mov_b32 v1, 0"), raw("s_mov_b64 exec, 1")]
    for p in range(1, np_):
        o += [raw(f"s_sub_u32 s38, s{70+2*p}, s70"), raw("v_mov_b32 v2, s38"), raw(f"buffer_store_dword v2, v1, s[4:7], s3 offen offset:{4*(p-1)}"), raw("s_nop 1")]
    o += [raw("s_waitcnt vmcnt(0)"), raw("s_endpgm")]
    return o
def diag(a, b, sub):
    o = [raw(f"s_sub_u32 s38, s{70+2*b}, s{70+2*a}"), raw(f"s_add_u32 s38, s38, {15000-sub}"), label("L_diag"), raw("s_memrealtime s[4:5]"), raw("s_waitcnt lgkmcnt(0)"),
         raw("s_sub_u32 s4, s4, s70"), raw("s_cmp_lt_u32 s4, s38"), raw("s_cbranch_scc1 L_diag"), raw("s_endpgm")]
    return o
def keyed(name, lst):
    for n, x in enumerate(lst): x.key = (name, n)
    return lst

def generate(path, force_slow=False, prof=False, knock=None, cfg=Cfg):
    pieces = {}
    trace = []
    def inst(name, lst):
        keyed(name, lst)
        if name in pieces:
            assert [x.text for x in pieces[name]] == [x.text for x in lst], name
        else: pieces[name] = lst
        trace.extend(lst)
    st = (lambda p: stamp(p)) if prof else (lambda p: [])
    if prof == 30:
        st = lambda p: []
        S, carry = startup(cfg, stamp30)
    else: S, carry = startup(cfg, (lambda p: stamp(p)[:2]) if prof else st)
    tr = transition(cfg, S, carry)
    inst("pro", S.o)
    inst("tr", tr + st(10) + [salu(f"s_mov_b32 s{sCnt}, {(NB - 1 - NS - 1)//2}")])
    for i in range(NS + 1, NB - 1):
        body = iteration(i)
        if i == NS + 1:
            for x in body:
                if x.ldsw and x.ldsw[0][0][0] == "P" and x.ldsw[0][0][1] == 1:
                    x.ldsw = x.ldsw + [(("X", p, u), "dead") for p in range(2) for u in range(2)] + [(("L2", b, u), "dead") for b in range(NS) for u in range(2)]
                if x.ldsw and x.ldsw[0][0][0] == "L": x.ldsw = x.ldsw + [(("V", 0, n), "dead") for n in range(8)]
        if not i & 1: body += [salu(f"s_sub_u32 s{sCnt}, s{sCnt}, 1"), salu(f"s_cmp_lg_u32 s{sCnt}, 0"), salu("s_cbranch_scc1 L_loop")]
        inst("odd" if i & 1 else "even", body)
    inst("it45", st(11) + iteration(NB-1, DMA=False))
    inst("it46", iteration(NB, QK=False, DMA=False))
    inst("it47", iteration(NB+1, QK=False, PV=False, DMA=False) + st(12) + ([wait_vm("all")] + st(13) + (dump(14) if prof == 1 else dump30() if prof == 30 else dump_dbg(9) if prof == 2 else diag(*prof)) if prof else []))
    chkc = [valu(f"v_cmp_nge_f32 vcc, s{sT}, v{vMax}", [f"v{vMax}"], ["vcc"]),
            valu(f"v_cmp_nle_f32 s[38:39], s{sT2}, v{vMin}", [f"v{vMin}"], ["s38", "s39"]),
            nop(4), salu("s_or_b64 vcc, vcc, s[38:39]", ["vcc", "s38"]),
            salu("s_cbranch_scc0 L_end" if not force_slow else "s_nop 0")]
    inst("chk", [salu(f"s_mov_b32 s{sT}, {LHI:#x}"), salu(f"s_mov_b32 s{sT2}, {LLO:#x}")] + chkc)
    inst("slow0", slow_setup())
    for i in (100, 104, 108):
        b = slow_block(i)
        for x in b:
            for r, tg in list(x.exp.items()):
                if isinstance(tg, tuple) and tg[0] == "so" and x.text.startswith("s_add"): del x.exp[r]
                if isinstance(tg, tuple) and tg[0] == "qrd": del x.exp[r]
        b += [salu(f"s_sub_u32 s{sCnt}, s{sCnt}, 1"), salu(f"s_cmp_lg_u32 s{sCnt}, 0"), salu("s_cbranch_scc1 L_slow")]
        inst("slow", b)
    waits, nops, errs = resolve(trace, {"pro", "tr", "it46", "it47", "chk", "slow0", "slow"})
    if errs:
        for e in errs[:40]: print("ERR", e)
        raise SystemExit(f"{len(errs)} checker errors")
    ref = open("standalone__gqa_softmax__near_ridge.s.ref").read().split("\n")
    hdr = [l for l in ref if l.startswith(";") and "@launch" not in l]
    L = hdr + [f"; @launch grid=(256,1,1) block=(256,1,1) lds={LDS}", '.amdgcn_target "amdgcn-amd-amdhsa--gfx950"', ".text", f".globl {KN}", ".p2align 8",
         f".type {KN},@function", f"{KN}:", "    s_cmp_ge_u32 s2, 0x100", "    s_cbranch_scc1 L_end"]
    order = ["pro", "tr", "odd", "even", "it45", "it46", "it47", "chk", "slow0", "slow"]
    for name in order:
        if name == "odd": L.append("L_loop:")
        if name == "slow": L.append("L_slow:")
        L.append(f"; ---- {name}")
        for x in pieces[name]:
            if knock and name in ("even", "odd") and knock(x): continue
            L += emit(x, waits, nops)
    L += ["L_end:", "    s_endpgm", '.section .rodata,"a"', ".p2align 6", f".amdhsa_kernel {KN}", "  .amdhsa_next_free_vgpr 512", "  .amdhsa_next_free_sgpr 102",
          "  .amdhsa_accum_offset 256", "  .amdhsa_group_segment_fixed_size 0", "  .amdhsa_kernarg_size 48", "  .amdhsa_user_sgpr_count 2",
          "  .amdhsa_user_sgpr_kernarg_segment_ptr 1", "  .amdhsa_system_sgpr_workgroup_id_x 1", ".end_amdhsa_kernel", ""]
    open(path, "w").write("\n".join(L))
    build(path)
    return nops, S

if __name__ == "__main__":
    print("VTOP", VTOP, al.p)
    Cfg.verbose = True
    n, S = generate("k3.s")
    Cfg.verbose = False
    generate("k3p.s", prof=1)
    generate("k3s.s", force_slow=True)
    print(len(n), sum(n.values()), {k: v for k, v in n.items() if k[0] not in ("slow",)})
    print(S.log)
```

```python
import gen2, shutil
from gen2 import Cfg
def var(name, prof, **kw):
    class C(Cfg): pass
    for k, v in kw.items(): setattr(C, k, v)
    gen2.generate(name + ".s", prof=prof, cfg=C); shutil.copy(name + ".s", "../cdna_kernels/" + name + ".s")
var("d4_0_10", (0,10,0))
var("d4_10_11", (10,11,0))
var("d4_0_13", (0,13,0))
```
